```python
import torch

def _softmax(x, axis=-1):
    return torch.softmax(x, dim=axis)
def _gelu(x):
    return torch.nn.functional.gelu(x, approximate="tanh")
def _silu(x):
    return torch.nn.functional.silu(x)
def _sigmoid(x):
    return torch.sigmoid(x)
def _layernorm(x, axis=-1, eps=1e-5):
    m = x.mean(dim=axis, keepdim=True)
    v = x.var(dim=axis, keepdim=True, unbiased=False)
    return (x - m) / torch.sqrt(v + eps)
def _scatter_add(tgt, idx, src, axis=0):
    return tgt.clone().index_add_(axis, idx, src)
def _segment_sum(src, seg, n):
    out = torch.zeros((n,) + src.shape[1:], dtype=src.dtype)
    return out.index_add_(0, seg, src)
def _pad(x, pw):
    flat = tuple(v for pair in reversed(pw) for v in pair)
    return torch.nn.functional.pad(x, flat)

kernel_name = 'standalone__gqa_softmax__near_ridge'

def setup_inputs():

    _w = (lambda a: (lambda t: t.to(torch.bfloat16) if t.is_floating_point() else t)(torch.as_tensor(a)))
    B, Hq, Hkv, Sq, Sk, D = 16, 32, 32, 512, 512, 192
    return {
        "q": _w((lambda *s: torch.randn(*s, dtype=torch.bfloat16) * 0.8)(B, Hq, Sq, D)),
        "k": _w((lambda *s: torch.randn(*s, dtype=torch.bfloat16) * 0.8)(B, Hkv, Sk, D)),
        "v": _w((lambda *s: torch.randn(*s, dtype=torch.bfloat16) * 0.05)(B, Hkv, Sk, D)),
    }

def reference(q, k, v):
    B, Hq, Sq, D = q.shape
    Hkv = k.shape[1]
    rep = Hq // Hkv
    k = (lambda x, n, axis: torch.repeat_interleave(x, n, dim=axis))(k, rep, axis=1)
    v = (lambda x, n, axis: torch.repeat_interleave(x, n, dim=axis))(v, rep, axis=1)
    scale = D ** -0.5
    scores = torch.einsum("bhqd,bhkd->bhqk", q, k) * scale
    p = _softmax(scores, axis=-1)
    return torch.einsum("bhqk,bhkd->bhqd", p, v)
```

```python
KNAME = "standalone__gqa_softmax__near_ridge_kernel"

def header(grid, block, lds):
    return f"""; Kernarg layout (48 bytes): q(0) k(8) v(16) out(24) debug(32) ws(40)
; @launch grid=({grid},1,1) block=({block},1,1) lds={lds}
.amdgcn_target "amdgcn-amd-amdhsa--gfx950"
.text
.globl {KNAME}
.p2align 8
.type {KNAME},@function
{KNAME}:
"""

def footer(vgpr=512, accum=256, sgpr=96):
    return f"""
.section .rodata,"a"
.p2align 6
.amdhsa_kernel {KNAME}
  .amdhsa_next_free_vgpr {vgpr}
  .amdhsa_next_free_sgpr {sgpr}
  .amdhsa_accum_offset {accum}
  .amdhsa_group_segment_fixed_size 0
  .amdhsa_kernarg_size 48
  .amdhsa_user_sgpr_count 2
  .amdhsa_user_sgpr_kernarg_segment_ptr 1
  .amdhsa_system_sgpr_workgroup_id_x 1
  .amdhsa_float_denorm_mode_32 3
.end_amdhsa_kernel
"""
```

```python
import re

def regs(prefix, base, n=1):
    return [f"{prefix}{base+i}" for i in range(n)]

def rtxt(prefix, base, n=1):
    return f"{prefix}{base}" if n == 1 else f"{prefix}[{base}:{base+n-1}]"

class R:
    def __init__(self, p, b, n=1):
        self.p, self.b, self.n = p, b, n
    def __str__(self):
        return rtxt(self.p, self.b, self.n)
    def all(self):
        return regs(self.p, self.b, self.n)
    def __getitem__(self, i):
        if isinstance(i, slice):
            st = i.start or 0
            en = self.n if i.stop is None else i.stop
            return R(self.p, self.b + st, en - st)
        assert 0 <= i < self.n
        return R(self.p, self.b + i, 1)

def V(b, n=1): return R('v', b, n)
def A(b, n=1): return R('a', b, n)
def S(b, n=1): return R('s', b, n)

def _rs(x):
    if isinstance(x, R): return x.all()
    if isinstance(x, str):
        if x in ('vcc', 'm0', 'scc', 'exec'): return [x]
        y = x.lstrip('-')
        m = re.fullmatch(r'([vas])(\d+)', y)
        if m: return [y]
        m = re.fullmatch(r'([vas])\[(\d+):(\d+)\]', y)
        if m: return regs(m.group(1), int(m.group(2)), int(m.group(3)) - int(m.group(2)) + 1)
    return []

class Ins:
    def __init__(self, text, kind, w=(), r=(), cost=1, tag=None, **kw):
        self.text, self.kind, self.cost, self.tag = text, kind, cost, tag
        self.w = [x for y in w for x in _rs(y)]
        self.r = [x for y in r for x in _rs(y)]
        self.states = 1
        self.rc = []
        self.rab = []
        self.__dict__.update(kw)
    def __repr__(self):
        return self.text

def valu(op, d, *src, mods="", trans=False, extra_w=(), extra_r=(), cost=None):
    t = f"{op} {d}, " + ", ".join(str(s) for s in src) + (" " + mods if mods else "")
    k = 'trans' if trans else 'valu'
    return Ins(t, k, w=[d, *extra_w], r=[*src, *extra_r], cost=cost if cost is not None else (2 if trans else 1))

def vcmp(op, a, b):
    return Ins(f"{op} vcc, {a}, {b}", 'valu', w=['vcc'], r=[a, b])

def swap32(a, b):
    return Ins(f"v_permlane32_swap_b32 {a}, {b}", 'perm', w=[a, b], r=[a, b])

def salu(op, d, *src, scc=True):
    t = f"{op} {d}, " + ", ".join(str(s) for s in src) if src else f"{op} {d}"
    w = [d] + (['scc'] if scc else [])
    return Ins(t, 'salu', w=w, r=list(src))

def csel(d, a, b):
    i = Ins(f"s_cselect_b32 {d}, {a}, {b}", 'salu', w=[d], r=[a, b, 'scc'])
    return i

def scmp(op, a, b):
    return Ins(f"{op} {a}, {b}", 'salu', w=['scc'], r=[a, b])

def mfma(d, a, b, c):
    i = Ins(f"v_mfma_f32_32x32x16_bf16 {d}, {a}, {b}, {c}", 'mfma', w=[d], r=[a, b, c], cost=2)
    i.rab = _rs(a) + _rs(b)
    i.rc = _rs(c)
    return i

def dsread(op, d, addr, off):
    assert 0 <= off < 65536
    return Ins(f"{op} {d}, {addr}" + (f" offset:{off}" if off else ""), 'dsr', w=[d], r=[addr])

def dswrite(op, addr, data, off):
    assert 0 <= off < 65536
    return Ins(f"{op} {addr}, {data}" + (f" offset:{off}" if off else ""), 'dsw', r=[addr, data])

def dma(voff, srd, soff, off, tag, pol=""):
    assert 0 <= off < 4096
    return Ins(f"buffer_load_dwordx4 {voff}, {srd}, {soff} offen" + (f" offset:{off}" if off else "") + (f" {pol}" if pol else "") + " lds",
               'dma', r=[voff, srd, soff, 'm0'], tag=tag)

def vstore(data, voff, srd, soff, off, tag=None, pol="", op="buffer_store_dwordx4"):
    assert 0 <= off < 4096
    i = Ins(f"{op} {data}, {voff}, {srd}, {soff} offen" + (f" offset:{off}" if off else "") + (f" {pol}" if pol else ""),
            'vst', r=[data, voff, srd, soff], tag=tag)
    i.data = _rs(data)
    return i

def nop(n=0):
    i = Ins(f"s_nop {n}", 'nop')
    i.states = n + 1
    return i

def raw(text, kind='misc', w=(), r=()):
    return Ins(text, kind, w=w, r=r)

def label(name):
    i = Ins(f"{name}:", 'label')
    i.states = 0
    i.cost = 0
    return i

def comment(t):
    i = Ins(f"; {t}", 'comment')
    i.states = 0
    i.cost = 0
    return i

class Wait(Ins):
    def __init__(self, lg=None, vm=None):
        super().__init__("s_waitcnt ???", 'wait')
        self.lg, self.vm = lg, vm
        self.lgN = 99
        self.vmN = 99
    def finalize(self):
        parts = []
        if self.vm is not None and self.vmN < 63:
            parts.append(f"vmcnt({self.vmN})")
        if self.lg is not None and self.lgN < 99:
            parts.append(f"lgkmcnt({min(self.lgN, 14)})")
        if parts:
            self.text = "s_waitcnt " + " ".join(parts)
            self.dead = False
        else:
            self.text = "; (wait not needed)"
            self.dead = True
            self.states = 0

def barrier():
    return Ins("s_barrier", 'barrier')

def solve_waits(trace):
    ds_seq = 0
    pend = {}
    last_lg = None
    done_upto = -1
    vm_ops = []
    errors = []
    for ins, ctx in trace:
        if isinstance(ins, Wait):
            if ins.lg is not None:
                if ins.lg == 0:
                    ins.lgN = 0
                    done_upto = ds_seq - 1
                last_lg = (ins, ds_seq)
            if ins.vm is not None:
                if ins.vm == 0:
                    ins.vmN = 0
                else:
                    want = ins.vm(ctx) if callable(ins.vm) else ins.vm
                    wants = want if isinstance(want, list) else [want]
                    idx = -1
                    for j in range(len(vm_ops) - 1, -1, -1):
                        if vm_ops[j] in wants:
                            idx = j
                            break
                    if idx >= 0:
                        ins.vmN = min(ins.vmN, len(vm_ops) - 1 - idx)
            continue
        for x in ins.r + (ins.w if ins.kind != 'dsr' else []):
            if x in pend:
                q = pend[x]
                if q <= done_upto:
                    del pend[x]
                    continue
                if last_lg is None or last_lg[1] <= q:
                    errors.append(f"uncovered DS result {x} used by: {ins.text}")
                else:
                    w, sq = last_lg
                    w.lgN = min(w.lgN, sq - 1 - q)
                    del pend[x]
        if ins.kind in ('dsr', 'dsw'):
            if ins.kind == 'dsr':
                for x in ins.w:
                    pend[x] = ds_seq
            ds_seq += 1
        if ins.kind in ('dma', 'vst', 'vld'):
            t = ins.tag(ctx) if callable(ins.tag) else ins.tag
            vm_ops.append(t)
    seen = set()
    for ins, ctx in trace:
        if isinstance(ins, Wait) and id(ins) not in seen:
            seen.add(id(ins))
            ins.finalize()
    return errors

def check_hazards(trace):
    errs = set()
    T = [i for i, _ in trace if i.states > 0 or i.kind in ('mfma',)]
    W = 24
    for n, c in enumerate(T):
        if c.text.startswith('s_cselect') or c.text.startswith('s_cbranch_scc'):
            for m in range(n - 1, -1, -1):
                if 'scc' in T[m].w:
                    if not T[m].text.startswith('s_cmp'):
                        errs.add(f"SCC clobbered: [{T[m].text}] -> [{c.text}]")
                    break
        dist = 0
        cr, cw = set(c.r), set(c.w)
        for m in range(n - 1, max(-1, n - W - 1), -1):
            p = T[m]
            pw = set(p.w)
            def need(k, why):
                if dist < k:
                    errs.add(f"HAZARD {why}: need {k} have {dist}: [{p.text}] -> [{c.text}]")
            if p.kind in ('valu', 'trans', 'perm'):
                if c.kind == 'mfma' and pw & cr: need(2, "valu->mfma")
                if c.kind == 'perm' and pw & cr: need(2, "valu->permlane")
                if p.kind == 'trans' and c.kind in ('valu', 'perm') and pw & cr: need(1, "trans->valu")
                sw = {x for x in pw if x[0] == 's' and x != 'scc'}
                if sw & cr:
                    if c.kind in ('dma', 'vst', 'vld'): need(5, "valu sgpr->vmem")
                    elif c.kind in ('valu', 'trans'): need(2, "valu sgpr->valu")
                if c.text.startswith('v_readfirstlane') and pw & cr: need(1, "valu->readfirstlane")
                if 'vcc' in pw and 'vcc' in cr and c.kind in ('valu',): need(2, "vcc->valu")
            if p.kind == 'mfma':
                if c.kind == 'mfma':
                    if pw & set(c.rab): need(12, "mfma D->mfma AB")
                    ov = pw & set(c.rc)
                    if ov and set(c.rc) != pw: need(10, "mfma D->mfma C partial")
                    if not c.rc and pw & cw: need(10, "mfma D->mfma D waw (C const)")
                elif c.kind in ('valu', 'trans', 'perm'):
                    if pw & (cr | cw): need(12, "mfma D->valu")
                    if set(p.rc) & cw: need(7, "mfma C war valu")
                elif c.kind in ('dsr', 'dsw', 'vst', 'dma', 'vld'):
                    if pw & (cr | cw): need(12, "mfma D->mem")
            if p.kind == 'salu' and 'm0' in pw and c.kind == 'dma': need(1, "m0->dma")
            if p.kind == 'vst':
                if set(p.data) & cw:
                    need(2 if c.kind in ('valu', 'trans', 'perm') else 1, "store data war")
            dist += p.states
            if dist >= W: break
    return sorted(errs)

def render(section):
    out = []
    for i in section:
        if i.kind == 'label':
            out.append(i.text)
        elif getattr(i, 'dead', False):
            continue
        else:
            out.append("    " + i.text)
    return "\n".join(out) + "\n"
```

```python
import sys, math, struct
sys.path.insert(0, "gen")
from isa import *
from common import KNAME

def f32bits(x):
    return struct.unpack("<I", struct.pack("<f", x))[0]

DEFAULT = dict(
    gb=15,
    kv_gaps=(17, 19, 21),
    q_gaps=(3, 5, 7),
    thr=1024.0,
    stamps=False,
    no_mfma=False, no_valu=False, no_dma=False, no_dsread=False, no_store=False,
    pol_q="", pol_kv="", pol_o="",
    setprio=None,
    pair_map=True,
    align=64,
)

NROUND = 4
TILE = 12288
QREG = 24576
RING0 = 4 * QREG
NSLOT = 5
RINGEND = RING0 + NSLOT * TILE
LDS_BYTES = 163840
HEADB = 196608
TENSOR = 100663296

def Sreg(par, u): return V(32 * par + 16 * u, 16)
def Oreg(t, u):
    return V(64 + 16 * (2 * t + u), 16) if t < 4 else A(16 * (2 * (t - 4) + u), 16)
def P00(par): return V(192 + 4 * par, 4)
P10 = V(200, 4); P01 = V(204, 4); P11 = V(208, 4)
def Preg(par, u, s2):
    if s2 == 0: return P00(par) if u == 0 else P10
    return P01 if u == 0 else P11
T = [V(212 + i) for i in range(8)]
vKa = [V(220 + i) for i in range(4)]
vKl, vVl, vVe, vVo = V(224), V(225), V(226), V(227)
vKd = [V(228 + i) for i in range(3)]
vVd = [V(231 + i) for i in range(3)]
nmc = [V(234), V(235)]
lsum = [V(236), V(237)]
sig = [V(238), V(239)]
vQa0, vLane16, vOw = V(240), V(241), V(242)
vOr = [V(243 + i) for i in range(3)]
vX0, vX1 = V(246), V(247)
vStamp = V(248)
vR = V(250, 2)
vR2 = V(252, 2)
def Qreg(u, s): return A(64 + 4 * (12 * u + s), 4)
def Frag(f): return A(160 + 4 * (f % 6), 4)

sQ, sK, sV, sO = S(4, 4), S(8, 4), S(12, 4), S(16, 4)
sC, sThr, sW3072 = S(20), S(21), S(22)
sKslot, sVslot = S(23), S(24)
sKoff, sVoff, sQoff, sQm0, sOoff = S(25), S(26), S(27), S(28), S(29)
sBody, sBlk, sNext, sQreg = S(30), S(31), S(32), S(33)
sT0, sT1, sT2, sT3 = S(34), S(35), S(36), S(37)
sTm = S(40, 2); sTm0 = S(42, 2)
sWave = S(44)

class Gen:
    def __init__(self, **kw):
        self.o = dict(DEFAULT); self.o.update(kw)
        self.stamp_id = 0

    def unit_ops(self, par, units):
        o = self.o
        pairs = []
        for (u, h) in units:
            for k in range(4):
                pairs.append((u, h, k))
        F, E, Acc = [], [], []
        for n, (u, h, k) in enumerate(pairs):
            s = Sreg(par, u)
            a, b = s[8 * h + 2 * k], s[8 * h + 2 * k + 1]
            ta, tb = T[2 * (n % 3)], T[2 * (n % 3) + 1]
            F.append([valu("v_fma_f32", a, a, sC, nmc[u]), valu("v_fma_f32", b, b, sC, nmc[u])])
            E.append([valu("v_exp_f32", ta, a, trans=True), valu("v_exp_f32", tb, b, trans=True)])
            if h == 0 and k == 0:
                adds = [valu("v_add_f32", sig[u], ta, tb)]
            else:
                adds = [valu("v_add_f32", sig[u], sig[u], ta), valu("v_add_f32", sig[u], sig[u], tb)]
            Acc.append(adds + [valu("v_cvt_pk_bf16_f32", Preg(par, u, h)[k], ta, tb)])
        n = len(pairs)
        ops = []
        ops += F[0]
        if n > 1: ops += F[1]
        ops += E[0]
        for i in range(n):
            if i + 2 < n: ops += F[i + 2]
            if i + 1 < n: ops += E[i + 1]
            elif n == 1: ops += [nop(0)]
            ops += Acc[i]
        if o['no_valu']: return []
        return ops

    def max_ops(self, par):
        ops = []
        for u in range(2):
            s = Sreg(par, u)
            d = vX0 if u == 0 else vX1
            ops.append(valu("v_max3_f32", d, s[0], s[1], s[2]))
            for i in range(3, 15, 2):
                ops.append(valu("v_max3_f32", d, d, s[i], s[i + 1]))
            ops.append(valu("v_max_f32", d, d, s[15]))
        ops += [nop(1), swap32(vX0, vX1), valu("v_max_f32", vX0, vX0, vX1), valu("v_mov_b32", vX1, vX0),
                nop(1), swap32(vX0, vX1),
                valu("v_mul_f32", nmc[0], self.negC, vX0), valu("v_mul_f32", nmc[1], self.negC, vX1)]
        if self.o['no_valu']: return []
        return ops

    def check_ops(self, par):
        a = [valu("v_max_f32", vX0, sig[0], sig[1]), vcmp("v_cmp_lt_f32", sThr, vX0)]
        return a

    def kread(self, s):
        return dsread("ds_read_b128", Frag(s), vKa[s & 3], 128 * (s >> 2))
    def vread(self, f, sec):
        s2, t = divmod(f, 6)
        fr = Frag(f)
        return dsread("ds_read_b64_tr_b16", fr[2 * sec:2 * sec + 2], vVo if (t & 1) else vVe,
                      64 * (t & ~1) + (16 * s2 + 8 * sec) * 384)
    KG = {0: (15,), 1: (16,), 2: (18,), 3: (20,), 4: (22,), 5: (24,), 6: (26,), 7: (28,), 8: (30,), 9: (32,), 10: (34,), 11: (35,)}
    VG = {0: (15, 15), 1: (16, 17), 2: (18, 19), 3: (20, 21), 4: (22, 23), 5: (24, 24), 6: (25, 26), 7: (27, 28),
          8: (29, 30), 9: (31, 32), 10: (33, 34), 11: (35, 36)}

    def reads_for(self, kind, own):
        res = []
        tab = self.KG if kind == 'K' else self.VG
        for f in range(12):
            for sec, g in enumerate(tab[f]):
                if (g >= 24) == own:
                    ins = self.kread(f) if kind == 'K' else self.vread(f, sec)
                    res.append((g - 24 if own else g, ins))
        if self.o['no_dsread']: return []
        return res

    def slot_advance(self, sreg):
        return [salu("s_add_u32", sreg, sreg, 2 * TILE), scmp("s_cmp_ge_u32", sreg, RINGEND),
                csel(sT0, NSLOT * TILE, 0), salu("s_sub_u32", sreg, sreg, sT0)]

    def kv_issue(self, kind, slotreg, tag):
        o = self.o
        if kind == 'K': vd, srd, off = vKd, sK, sKoff
        else: vd, srd, off = vVd, sV, sVoff
        m0 = salu("s_add_u32", "m0", slotreg, sW3072)
        ps = [dma(vd[j], srd, off, 1024 * j, tag, o['pol_kv']) for j in range(3)]
        adv = salu("s_add_u32", off, off, TILE)
        if o['no_dma']: ps = []
        return m0, ps, adv

    def q_issue(self, tag):
        o = self.o
        m0 = salu("s_mov_b32", "m0", sQm0, scc=False)
        ps = [dma(vKd[j], sQ, sQoff, 1024 * j, tag, o['pol_q']) for j in range(3)]
        adv = [salu("s_add_u32", sQoff, sQoff, 3072), salu("s_add_u32", sQm0, sQm0, 3072)]
        if o['no_dma']: ps = []
        return m0, ps, adv

    def stamp(self):
        if not self.o['stamps']: return [], []
        return ([raw("s_memtime s[40:41]", 'misc')],
                [raw("s_sub_u32 s40, s40, s42", 'salu', w=['s40', 'scc']),
                 raw("v_writelane_b32 v248, s40, m0_dummy", 'misc')])

    def phase(self, kind, par, *, mfmas=True, stream=None, first=False, next_reads=True, own_reads=True,
              qgroups=0, qreads=False, pre=(), name="", check=None, issue=True, extra_fixed=()):
        o = self.o
        gb = o['gb']
        NG = 24
        fixed = [[] for _ in range(NG)]
        prewait = {}
        mf = []
        if kind == 'A':
            for s in range(12):
                for u in range(2):
                    d = Sreg(par ^ 1, u)
                    mf.append(mfma(d, Frag(s), Qreg(u, s), 0 if s == 0 else d))
        else:
            for s2 in range(2):
                for t in range(6):
                    for u in range(2):
                        d = Oreg(t, u)
                        mf.append(mfma(d, Frag(6 * s2 + t), Preg(par, u, s2), 0 if (first and s2 == 0) else d))
        mykind = 'K' if kind == 'A' else 'V'
        nxkind = 'V' if kind == 'A' else 'K'
        if own_reads:
            for g, ins in self.reads_for(mykind, True): fixed[g].append(ins)
        for g in (0, 4, 8, 12):
            prewait[g] = Wait(lg='auto')
        slotreg = sKslot if kind == 'A' else sVslot
        bar = [Wait(lg=0, vm=lambda c, d=(0 if kind == 'A' else 1): ('it', c['p0'] + self._pidx(c, name) + 1)), barrier()]
        fixed[gb] = bar + fixed[gb]
        if next_reads:
            for g, ins in self.reads_for(nxkind, False): fixed[g].append(ins)
        if issue:
            m0, ps, adv = self.kv_issue(nxkind, slotreg, lambda c: ('it', c['p0'] + self._pidx(c, name) + 5))
            kg = o['kv_gaps']
            fixed[kg[0] - 1].append(m0)
            for g, p in zip(kg, ps): fixed[g].append(p)
            fixed[min(23, kg[-1] + 1)].append(adv)
        if kind == 'A':
            fixed[8].append(valu("v_add_u32", vVe, sVslot, vVl))
            fixed[9].append(valu("v_xor_b32", vVo, 64, vVe))
            for i, x in enumerate(self.slot_advance(sKslot)): fixed[min(23, o['kv_gaps'][0] + 1 + i)].append(x)
        else:
            fixed[7].append(valu("v_add_u32", vKa[0], sKslot, vKl))
            fixed[8].append(valu("v_xor_b32", vKa[1], 32, vKa[0]))
            fixed[9].append(valu("v_xor_b32", vKa[2], 64, vKa[0]))
            fixed[10].append(valu("v_xor_b32", vKa[3], 0x60, vKa[0]))
            for i, x in enumerate(self.slot_advance(sVslot)): fixed[min(23, o['kv_gaps'][0] + 1 + i)].append(x)
        qg = o['q_gaps']
        for n in range(qgroups):
            m0, ps, adv = self.q_issue(lambda c, n=n: ('q', c['blk'] + 1))
            off = 0 if n == 0 else 6
            fixed[qg[0] - 1 + off].append(m0)
            for g, p in zip(qg, ps): fixed[g + off].append(p)
            for x in adv: fixed[qg[-1] + off].append(x)
        if qreads:
            qa = qreads
            lst = []
            for s in range(12):
                for u in range(2):
                    lst.append(dsread("ds_read_b128", Qreg(u, s), qa[s & 3], 128 * (s >> 2) + 12288 * u))
            if not o['no_dsread']:
                for i, x in enumerate(lst): fixed[i].append(x)
        for g, x in extra_fixed: fixed[g].append(x)
        stream = list(stream or [])
        g0 = 0
        if stream and isinstance(stream[0], int):
            g0 = stream.pop(0)
        cap = 6.0
        free = [max(0.25, cap - sum(i.cost for i in fixed[g])) if g >= g0 else 0.0 for g in range(NG)]
        tot = sum(i.cost for i in stream)
        totfree = sum(free)
        out = []
        out += list(pre)
        pos = 0
        cum = 0.0
        used = 0.0
        for g in range(NG):
            if g in prewait and own_reads is not None: out.append(prewait[g])
            if mfmas and not o['no_mfma']: out.append(mf[g])
            cum += free[g]
            target = tot * cum / totfree if totfree else 0
            mine = []
            while pos < len(stream) and (used + 0.5 * stream[pos].cost <= target or g == NG - 1):
                mine.append(stream[pos]); used += stream[pos].cost; pos += 1
            fx = fixed[g]
            if g == gb:
                out += fx[:2]; fx = fx[2:]
            a, b = list(fx), mine
            while a or b:
                if b: out.append(b.pop(0))
                if a: out.append(a.pop(0))
        if check is not None:
            out += check
        return [comment(f"---- phase {name}")] + out

    def _pidx(self, c, name):
        return c['pidx']


def build(path, **kw):
    g = Gen(**kw)
    o = g.o
    c = (192 ** -0.5) * math.log2(math.e)
    g.negC = f"0x{f32bits(-c):08x}"
    secs = {}

    st = []
    st += [scmp("s_cmp_ge_u32", "s2", 256), raw("s_cbranch_scc1 L_end", 'branch')]
    st += [raw("s_load_dwordx4 s[4:7], s[0:1], 0", 'smem', w=["s[4:7]"]),
           raw("s_load_dwordx4 s[8:11], s[0:1], 16", 'smem', w=["s[8:11]"])]
    lane, wv = V(1), V(2)
    st += [valu("v_and_b32", lane, 63, V(0)), valu("v_lshrrev_b32", wv, 6, V(0)), nop(0),
           raw("v_readfirstlane_b32 s44, v2", 'valu', w=['s44'], r=['v2'])]
    st += [raw("s_waitcnt lgkmcnt(0)", 'misc')]
    st += [salu("s_mov_b32", S(16), S(10), scc=False), salu("s_mov_b32", S(17), S(11), scc=False),
           salu("s_mov_b32", S(12), S(8), scc=False), salu("s_mov_b32", S(13), S(9), scc=False),
           salu("s_mov_b32", S(8), S(6), scc=False), salu("s_mov_b32", S(9), S(7), scc=False)]
    for b in (4, 8, 12, 16):
        st += [salu("s_mov_b32", S(b + 2), TENSOR, scc=False), salu("s_mov_b32", S(b + 3), "0x20000", scc=False)]
    st += [salu("s_mov_b32", sC, f"0x{f32bits(c):08x}", scc=False), salu("s_mov_b32", sThr, f"0x{f32bits(o['thr']):08x}", scc=False)]
    st += [salu("s_mul_i32", sW3072, sWave, 3072, scc=False), salu("s_mul_i32", sQreg, sWave, QREG, scc=False)]
    if o['pair_map']:
        st += [salu("s_lshr_b32", sT0, "s2", 4), salu("s_lshl_b32", sT0, sT0, 3), salu("s_and_b32", sT1, "s2", 7),
               salu("s_add_u32", sT0, sT0, sT1), salu("s_lshr_b32", sT1, "s2", 3), salu("s_and_b32", sT1, sT1, 1)]
    else:
        st += [salu("s_lshr_b32", sT0, "s2", 1), salu("s_and_b32", sT1, "s2", 1)]
    st += [salu("s_mul_i32", sT0, sT0, HEADB, scc=False)]
    st += [salu("s_add_u32", sKoff, sT0, sW3072), salu("s_mov_b32", sVoff, sKoff, scc=False),
           salu("s_add_u32", sNext, sKoff, 128 * HEADB)]
    st += [salu("s_mul_i32", sT1, sT1, 4 * QREG, scc=False), salu("s_add_u32", sT0, sT0, sT1),
           salu("s_add_u32", sQoff, sT0, sQreg), salu("s_mov_b32", sOoff, sQoff, scc=False),
           salu("s_mov_b32", sQm0, sQreg, scc=False)]
    t0, t1, t2, t3, t4 = V(3), V(4), V(5), V(6), V(7)
    hi, n31 = V(8), V(9)
    st += [valu("v_lshrrev_b32", hi, 5, lane), valu("v_and_b32", n31, 31, lane), valu("v_lshlrev_b32", vLane16, 4, lane)]
    st += [salu("s_and_b32", sT2, sWave, 1), salu("s_lshl_b32", sT2, sT2, 2)]
    for j in range(3):
        st += [valu("v_add_u32", t0, 64 * j, lane), valu("v_mul_u32_u24", t0, 2731, t0), valu("v_lshrrev_b32", t0, 16, t0),
               valu("v_lshrrev_b32", t1, 1, t0),
               valu("v_or_b32", t2, sT2, t1), valu("v_xor_b32", t2, t2, lane), valu("v_lshlrev_b32", vKd[j], 4, t2),
               valu("v_and_b32", t2, 1, t1), valu("v_lshlrev_b32", t2, 2, t2), valu("v_xor_b32", t2, t2, lane),
               valu("v_lshlrev_b32", vVd[j], 4, t2),
               valu("v_xor_b32", t2, t0, lane), valu("v_lshlrev_b32", t2, 4, t2), valu("v_add_u32", t2, 1024 * j, t2),
               valu("v_add_u32", vOr[j], sQreg, t2)]
    st += [valu("v_mul_u32_u24", t0, 384, n31), valu("v_lshrrev_b32", t1, 1, n31), valu("v_and_b32", t2, 7, t1),
           valu("v_xor_b32", t2, t2, hi), valu("v_lshlrev_b32", t2, 4, t2), valu("v_add_u32", vKl, t0, t2)]
    st += [valu("v_and_b32", t2, 3, t1), valu("v_or_b32", t2, sT2, t2), valu("v_xor_b32", t2, t2, hi),
           valu("v_lshlrev_b32", t2, 4, t2), valu("v_add_u32", t2, t0, t2), valu("v_add_u32", vQa0, sQreg, t2)]
    st += [valu("v_lshlrev_b32", t2, 1, hi), valu("v_and_b32", t3, 7, n31), valu("v_xor_b32", t2, t2, t3),
           valu("v_lshlrev_b32", t2, 4, t2), valu("v_add_u32", t2, t0, t2), valu("v_add_u32", vOw, sQreg, t2)]
    st += [valu("v_bfe_u32", t0, lane, 2, 2),
           valu("v_lshlrev_b32", t1, 2, hi), valu("v_add_u32", t1, t1, t0), valu("v_mul_u32_u24", t1, 384, t1),
           valu("v_lshrrev_b32", t2, 1, t0), valu("v_lshlrev_b32", t2, 6, t2), valu("v_add_u32", t1, t1, t2),
           valu("v_and_b32", t2, 1, lane), valu("v_lshlrev_b32", t2, 5, t2), valu("v_add_u32", t1, t1, t2),
           valu("v_bfe_u32", t2, lane, 4, 1), valu("v_lshlrev_b32", t2, 4, t2), valu("v_add_u32", t1, t1, t2),
           valu("v_bfe_u32", t2, lane, 1, 1), valu("v_lshlrev_b32", t2, 3, t2), valu("v_add_u32", vVl, t1, t2)]
    st += [valu("v_mov_b32", lsum[0], 0), valu("v_mov_b32", lsum[1], 0)]
    if o['stamps']:
        st += [valu("v_mov_b32", vStamp, 0), raw("s_memtime s[42:43]", 'misc'), raw("s_waitcnt lgkmcnt(0)", 'misc'),
               salu("s_mov_b32", S(45), 0, scc=False)]
    def issue_item(kind, slot, n):
        vd, srd, off = (vKd, sK, sKoff) if kind == 'K' else (vVd, sV, sVoff)
        r = [salu("s_add_u32", "m0", sW3072, RING0 + slot * TILE), nop(0)]
        r += [dma(vd[j], srd, off, 1024 * j, ('it', n), o['pol_kv']) for j in range(3)] if not o['no_dma'] else []
        r += [salu("s_add_u32", off, off, TILE)]
        return r
    st += issue_item('K', 0, 0)
    for gq in range(8):
        m0, ps, adv = g.q_issue(('q', 0))
        st += [m0, nop(0)] + ps + adv
    st += issue_item('K', 2, 2) + issue_item('V', 3, 3) + issue_item('K', 4, 4)
    st += [salu("s_add_u32", sQoff, sOoff, 128 * HEADB), salu("s_mov_b32", sQm0, sQreg, scc=False)]
    st += [salu("s_mov_b32", sKslot, RING0, scc=False), salu("s_mov_b32", sVslot, RING0 + TILE, scc=False),
           salu("s_mov_b32", sBlk, 0, scc=False)]
    st += [valu("v_add_u32", vKa[0], sKslot, vKl), valu("v_xor_b32", vKa[1], 32, vKa[0]),
           valu("v_xor_b32", vKa[2], 64, vKa[0]), valu("v_xor_b32", vKa[3], 0x60, vKa[0])]
    qa = [V(250), V(251), V(252), V(253)]
    def qaddr():
        return [valu("v_mov_b32", qa[0], vQa0), valu("v_xor_b32", qa[1], 32, vQa0),
                valu("v_xor_b32", qa[2], 64, vQa0), valu("v_xor_b32", qa[3], 0x60, vQa0)]
    st += qaddr()
    st += [Wait(lg=0, vm=lambda c: [('it', 0), ('q', 0)]), barrier()]
    if not o['no_dsread']:
        for s in range(12):
            for u in range(2):
                st.append(dsread("ds_read_b128", Qreg(u, s), qa[s & 3], 128 * (s >> 2) + 12288 * u))
                if (2 * s + u) % 8 == 7: st.append(Wait(lg='auto'))
        st.append(Wait(lg=0))
        for f in range(5): st.append(g.kread(f))
    secs['setup'] = st

    secs['Am1'] = g.phase('A', 1, stream=None, next_reads=False, name="A(-1)")
    secs['Bm1'] = g.phase('B', 1, mfmas=False, own_reads=False,
                          stream=[0, nop(7), nop(3)] + g.max_ops(0) + g.unit_ops(0, [(0, 0), (1, 0)]), name="B(-1)")

    rare_sites = []
    def iteration(par, name, first=False, qgroupsA=0, qreads=False, newblock=False, preA=()):
        lab = f"L_ret_{name}"
        rare_sites.append((par, name, lab))
        chk = g.check_ops(par)
        strA = g.unit_ops(par, [(0, 1), (1, 1)]) + ([] if o['no_valu'] else chk)
        post = []
        if not o['no_valu']:
            post = [raw(f"s_cbranch_vccnz L_rare_{name}", 'branch', r=['vcc']), label(lab),
                    valu("v_add_f32", lsum[0], lsum[0], sig[0]), valu("v_add_f32", lsum[1], lsum[1], sig[1])]
        a = g.phase('A', par, stream=strA, qgroups=qgroupsA, name=f"A {name}", check=post, pre=preA)
        units = g.unit_ops(par ^ 1, [(0, 0), (1, 0)])
        if newblock:
            strB = [2] + g.max_ops(par ^ 1) + units
        else:
            strB = [2] + units
        extra = []
        if qreads:
            extra = [(0, x) for x in []]
        b = g.phase('B', par, stream=strB, first=first, qreads=(qa if qreads else False), name=f"B {name}",
                    pre=(qaddr() + [Wait(vm=lambda c: ('q', c['blk'] + 1))]) if qreads else ())
        return a, b

    a0, b0 = iteration(0, "b0e", first=True, qgroupsA=2)
    a1, b1 = iteration(1, "b0o")
    secs['body0'] = (a0, b0, a1, b1)
    pre = [scmp("s_cmp_eq_u32", sBody, 6), csel(sKoff, sNext, sKoff)]
    a0, b0 = iteration(0, "ste", qgroupsA=1, preA=pre)
    a1, b1 = iteration(1, "sto")
    secs['steady'] = (a0, b0, a1, b1)
    pre = [salu("s_mov_b32", sVoff, sNext, scc=False)]
    a0, b0 = iteration(0, "b7e", qreads=True, preA=pre)
    a1, b1 = iteration(1, "b7o", newblock=True)
    secs['body7'] = (a0, b0, a1, b1)

    ep = [comment("---- epilogue")]
    ep += [nop(1), swap32(lsum[0], lsum[1]), valu("v_add_f32", vR[0], lsum[0], lsum[1]),
           valu("v_rcp_f32", vR[0], vR[0], trans=True), nop(0), valu("v_mov_b32", vR2[0], vR[0]),
           nop(1), swap32(vR[0], vR2[0]),
           valu("v_mov_b32", lsum[0], 0), valu("v_mov_b32", lsum[1], 0)]
    wa = [T[0], T[1], T[2], T[3]]
    ep += [valu("v_mov_b32", wa[0], vOw), valu("v_xor_b32", wa[1], 16, vOw), valu("v_xor_b32", wa[2], 64, vOw),
           valu("v_xor_b32", wa[3], 0x50, vOw)]
    Sfree = V(32, 32)
    Wb = [Sfree[0:8], Sfree[8:16]]
    tmp = Sfree[16:32]
    nt = 0
    rb = [V(204, 4), V(208, 4), V(196, 4), V(212 + 4, 4)]
    def conv(t, u):
        nonlocal nt
        r = []
        src = Oreg(t, u)
        rin = vR if u == 0 else vR2
        if src.p == 'a':
            for i in range(16): r.append(valu("v_accvgpr_read_b32", tmp[i], src[i]))
            src = tmp
        W = Wb[nt & 1]; nt += 1
        for i in range(0, 16, 2):
            r.append(valu("v_pk_mul_f32", src[i:i + 2], src[i:i + 2], rin, mods="op_sel_hi:[1,0]"))
        for i in range(0, 16, 2):
            r.append(valu("v_cvt_pk_bf16_f32", W[i // 2], src[i], src[i + 1]))
        for k in range(2):
            r.append(dswrite("ds_write_b128", wa[2 * (t & 1) + k], W[4 * k:4 * k + 4], 128 * (t >> 1) + 12288 * u))
        return r
    def readback(i):
        gq, j = divmod(i, 3)
        return dsread("ds_read_b128", rb[i % 4], vOr[j], 3072 * gq)
    def store(i):
        r = []
        if i % 4 == 0 and i > 0: r.append(salu("s_add_u32", sOoff, sOoff, 4096))
        if not o['no_store']:
            r.append(vstore(rb[i % 4], vLane16, sO, sOoff, 1024 * (i % 4), tag=('o',), pol=o['pol_o']))
        return r
    for t in range(6): ep += conv(t, 0)
    ep += [Wait(lg=0)]
    pieces = list(range(12))
    for t in range(6):
        cv = conv(t, 1)
        i0, i1 = 2 * t, 2 * t + 1
        ep += [readback(i0), readback(i1)]
        ep += cv[:-2]
        ep += [Wait(lg='auto')] + store(i0) + store(i1)
        ep += cv[-2:]
    ep += [Wait(lg=0)]
    for i in range(12, 24, 4):
        ep += [readback(i), readback(i + 1), readback(i + 2), readback(i + 3)]
        for k in range(4):
            ep += [Wait(lg='auto')] + store(i + k)
    ep += [salu("s_add_u32", sOoff, sOoff, 128 * HEADB - 5 * 4096),
           salu("s_add_u32", sNext, sNext, 128 * HEADB),
           salu("s_add_u32", sQoff, sOoff, 128 * HEADB), salu("s_mov_b32", sQm0, sQreg, scc=False)]
    secs['epi'] = ep

    def rare(par):
        r = [comment(f"rare rescale path parity {par}")]
        for u in range(2):
            s = Sreg(par, u)
            d = vX0 if u == 0 else vX1
            r.append(valu("v_max3_f32", d, s[0], s[1], s[2]))
            for i in range(3, 15, 2): r.append(valu("v_max3_f32", d, d, s[i], s[i + 1]))
            r.append(valu("v_max_f32", d, d, s[15]))
        r += [nop(1), swap32(vX0, vX1), valu("v_max_f32", vX0, vX0, vX1), valu("v_max_f32", vX0, 0, vX0),
              valu("v_mov_b32", vX1, vX0), nop(1), swap32(vX0, vX1)]
        dl = [vX0, vX1]
        ff = [T[0], T[1]]
        for u in range(2):
            r += [valu("v_sub_f32", ff[u], 0, dl[u]), valu("v_exp_f32", ff[u], ff[u], trans=True), nop(0),
                  valu("v_sub_f32", nmc[u], nmc[u], dl[u]), valu("v_mul_f32", lsum[u], lsum[u], ff[u])]
            for t in range(6):
                ot = Oreg(t, u)
                for i in range(16):
                    if ot.p == 'v':
                        r.append(valu("v_mul_f32", ot[i], ot[i], ff[u]))
                    else:
                        r += [valu("v_accvgpr_read_b32", T[2], ot[i]), valu("v_mul_f32", T[2], T[2], ff[u]),
                              valu("v_accvgpr_write_b32", ot[i], T[2])]
        for u in range(2):
            s = Sreg(par, u)
            for i in range(16): r.append(valu("v_sub_f32", s[i], s[i], dl[u]))
            for i in range(0, 16, 2):
                h, k = divmod(i // 2, 4)
                r += [valu("v_exp_f32", T[2], s[i], trans=True), valu("v_exp_f32", T[3], s[i + 1], trans=True), nop(0)]
                if i == 0: r += [valu("v_add_f32", sig[u], T[2], T[3])]
                else: r += [valu("v_add_f32", sig[u], sig[u], T[2]), valu("v_add_f32", sig[u], sig[u], T[3])]
                r += [valu("v_cvt_pk_bf16_f32", Preg(par, u, h)[k], T[2], T[3])]
        r += [nop(1)]
        return r
    rare_code = []
    for par, name, lab in rare_sites:
        pass
    rsecs = {}
    for par in range(2):
        body = rare(par)
        names = [(n, l) for p, n, l in rare_sites if p == par]
        code = [label(f"L_rare_{n}") for n, l in names] + body
        code += [scmp("s_cmp_eq_u32", sBody, 0), raw(f"s_cbranch_scc1 {names[0][1]}", 'branch'),
                 scmp("s_cmp_eq_u32", sBody, 7), raw(f"s_cbranch_scc1 {names[2][1]}", 'branch'),
                 raw(f"s_branch {names[1][1]}", 'branch')]
        rsecs[par] = code

    def flat(t): return [x for p in t for x in p]
    L = []
    L += secs['setup'] + secs['Am1'] + secs['Bm1']
    blk_head = [label("L_block"), salu("s_mov_b32", sBody, 0, scc=False)]
    st_head = [salu("s_mov_b32", sBody, 1, scc=False), raw(f".p2align {int(math.log2(o['align']))}", 'comment'), label("L_steady")]
    st_head[1].states = 0
    st_tail = [salu("s_add_u32", sBody, sBody, 1), scmp("s_cmp_lt_u32", sBody, 7), raw("s_cbranch_scc1 L_steady", 'branch')]
    blk_tail = [salu("s_add_u32", sBlk, sBlk, 1), scmp("s_cmp_lt_u32", sBlk, NROUND), raw("s_cbranch_scc1 L_block", 'branch')]
    fin = [raw("s_waitcnt vmcnt(0)", 'misc'), label("L_end"), raw("s_endpgm", 'misc')]

    trace = []
    def run(sec, ctx):
        for i in sec: trace.append((i, ctx))
    run(secs['setup'], dict(p0=0, pidx=0, blk=-1))
    run(secs['Am1'], dict(p0=0, pidx=0, blk=-1))
    run(secs['Bm1'], dict(p0=0, pidx=1, blk=-1))
    p = 2
    for blk in range(NROUND):
        run(blk_head, {})
        for ph in secs['body0']:
            run(ph, dict(p0=0, pidx=p, blk=blk)); p += 1
        run(st_head, {})
        for b in range(6):
            for ph in secs['steady']:
                run(ph, dict(p0=0, pidx=p, blk=blk)); p += 1
            run(st_tail, {})
        for ph in secs['body7']:
            run(ph, dict(p0=0, pidx=p, blk=blk)); p += 1
        run(secs['epi'], dict(blk=blk))
        run(blk_tail, {})
    errs = solve_waits(trace)
    errs += check_hazards(trace)
    for par, name, lab in rare_sites:
        secname = {'b0': 'body0', 'st': 'steady', 'b7': 'body7'}[name[:2]]
        seq = flat(secs[secname])
        idx = [k for k, i in enumerate(seq) if i.kind == 'label' and i.text == lab + ":"]
        if idx:
            k = idx[0]
            t2 = [(i, {}) for i in seq[max(0, k - 40):k] + rsecs[par] + seq[k:k + 40]]
            errs += check_hazards(t2)
    if errs:
        for e in sorted(set(errs)): print("ERR", e)
        raise SystemExit("generation errors")

    L += blk_head + flat(secs['body0']) + st_head + flat(secs['steady']) + st_tail + flat(secs['body7']) + secs['epi'] + blk_tail + fin
    L += rsecs[0] + rsecs[1]
    hdr = f"""; Kernarg layout (48 bytes): q(0) k(8) v(16) out(24) debug(32) ws(40)
; @launch grid=(256,1,1) block=(256,1,1) lds={LDS_BYTES}
.amdgcn_target "amdgcn-amd-amdhsa--gfx950"
.text
.globl {KNAME}
.p2align 8
.type {KNAME},@function
{KNAME}:
"""
    ftr = f"""
.section .rodata,"a"
.p2align 6
.amdhsa_kernel {KNAME}
  .amdhsa_next_free_vgpr 448
  .amdhsa_next_free_sgpr 64
  .amdhsa_accum_offset 256
  .amdhsa_group_segment_fixed_size 0
  .amdhsa_kernarg_size 48
  .amdhsa_user_sgpr_count 2
  .amdhsa_user_sgpr_kernarg_segment_ptr 1
  .amdhsa_system_sgpr_workgroup_id_x 1
  .amdhsa_float_denorm_mode_32 3
.end_amdhsa_kernel
"""
    body = []
    for i in L:
        if i.kind == 'label': body.append(i.text)
        elif getattr(i, 'dead', False): continue
        else: body.append("    " + i.text)
    open(path, "w").write(hdr + "\n".join(body) + "\n" + ftr)
    n = sum(1 for i in L if i.states > 0)
    print(f"wrote {path}: {n} instructions")

if __name__ == "__main__":
    import ast
    path = sys.argv[1]
    kw = {}
    for a in sys.argv[2:]:
        k, v = a.split("=", 1)
        kw[k] = ast.literal_eval(v)
    build(path, **kw)
```

```python
import sys, math, struct
sys.path.insert(0, "gen")
from isa import *
from common import KNAME

def f32bits(x):
    return struct.unpack("<I", struct.pack("<f", x))[0]

DEFAULT = dict(
    gb=15,
    kv_gaps=(17, 19, 21),
    q_gaps=(3, 5, 7),
    thr=1024.0,
    stamps=False,
    no_mfma=False, no_valu=False, no_dma=False, no_dsread=False, no_store=False,
    pol_q="", pol_kv="", pol_o="",
    setprio=None,
    pair_map=True,
    align=64,
)

NROUND = 4
TILE = 12288
QREG = 24576
RING0 = 4 * QREG
NSLOT = 5
RINGEND = RING0 + NSLOT * TILE
LDS_BYTES = 163840
HEADB = 196608
TENSOR = 100663296

def Sreg(par, u): return V(32 * par + 16 * u, 16)
def Oreg(t, u):
    return V(64 + 16 * (2 * t + u), 16) if t < 4 else A(16 * (2 * (t - 4) + u), 16)
def P00(par): return V(192 + 4 * par, 4)
P10 = V(200, 4); P01 = V(204, 4); P11 = V(208, 4)
def Preg(par, u, s2):
    if s2 == 0: return P00(par) if u == 0 else P10
    return P01 if u == 0 else P11
T = [V(212 + i) for i in range(8)]
vKa = [V(220 + i) for i in range(4)]
vKl, vVl, vVe, vVo = V(224), V(225), V(226), V(227)
vKd = [V(228 + i) for i in range(3)]
vVd = [V(231 + i) for i in range(3)]
nmc = [V(234), V(235)]
lsum = [V(236), V(237)]
sig = [V(238), V(239)]
vQa0, vLane16, vOw = V(240), V(241), V(242)
vOr = [V(243 + i) for i in range(3)]
vX0, vX1 = V(246), V(247)
vStamp = V(248)
vR = V(250, 2)
vR2 = V(252, 2)
def Qreg(u, s): return A(64 + 4 * (12 * u + s), 4)
def Frag(f): return A(160 + 4 * (f % 6), 4)

sQ, sK, sV, sO = S(4, 4), S(8, 4), S(12, 4), S(16, 4)
sC, sThr, sW3072 = S(20), S(21), S(22)
sKslot, sVslot = S(23), S(24)
sKoff, sVoff, sQoff, sQm0, sOoff = S(25), S(26), S(27), S(28), S(29)
sBody, sBlk, sNext, sQreg = S(30), S(31), S(32), S(33)
sT0, sT1, sT2, sT3 = S(34), S(35), S(36), S(37)
sTm = S(40, 2); sTm0 = S(42, 2)
sWave = S(44)

class Gen:
    def __init__(self, **kw):
        self.o = dict(DEFAULT); self.o.update(kw)
        self.stamp_id = 0

    def unit_ops(self, par, units):
        o = self.o
        pairs = []
        for (u, h) in units:
            for k in range(4):
                pairs.append((u, h, k))
        F, E, Acc = [], [], []
        for n, (u, h, k) in enumerate(pairs):
            s = Sreg(par, u)
            a, b = s[8 * h + 2 * k], s[8 * h + 2 * k + 1]
            ta, tb = T[2 * (n % 3)], T[2 * (n % 3) + 1]
            F.append([valu("v_fma_f32", a, a, sC, nmc[u]), valu("v_fma_f32", b, b, sC, nmc[u])])
            E.append([valu("v_exp_f32", ta, a, trans=True), valu("v_exp_f32", tb, b, trans=True)])
            if h == 0 and k == 0:
                adds = [valu("v_add_f32", sig[u], ta, tb)]
            else:
                adds = [valu("v_add_f32", sig[u], sig[u], ta), valu("v_add_f32", sig[u], sig[u], tb)]
            Acc.append(adds + [valu("v_cvt_pk_bf16_f32", Preg(par, u, h)[k], ta, tb)])
        n = len(pairs)
        ops = []
        ops += F[0]
        if n > 1: ops += F[1]
        ops += E[0]
        for i in range(n):
            if i + 2 < n: ops += F[i + 2]
            if i + 1 < n: ops += E[i + 1]
            elif n == 1: ops += [nop(0)]
            ops += Acc[i]
        if o['no_valu']: return []
        return ops

    def max_ops(self, par):
        ops = []
        for u in range(2):
            s = Sreg(par, u)
            d = vX0 if u == 0 else vX1
            ops.append(valu("v_max3_f32", d, s[0], s[1], s[2]))
            for i in range(3, 15, 2):
                ops.append(valu("v_max3_f32", d, d, s[i], s[i + 1]))
            ops.append(valu("v_max_f32", d, d, s[15]))
        ops += [nop(1), swap32(vX0, vX1), valu("v_max_f32", vX0, vX0, vX1), valu("v_mov_b32", vX1, vX0),
                nop(1), swap32(vX0, vX1),
                valu("v_mul_f32", nmc[0], self.negC, vX0), valu("v_mul_f32", nmc[1], self.negC, vX1)]
        if self.o['no_valu']: return []
        return ops

    def check_ops(self, par):
        a = [valu("v_max_f32", vX0, sig[0], sig[1]), vcmp("v_cmp_lt_f32", sThr, vX0)]
        return a

    def kread(self, s):
        return dsread("ds_read_b128", Frag(s), vKa[s & 3], 128 * (s >> 2))
    def vread(self, f, sec):
        s2, t = divmod(f, 6)
        fr = Frag(f)
        return dsread("ds_read_b64_tr_b16", fr[2 * sec:2 * sec + 2], vVo if (t & 1) else vVe,
                      64 * (t & ~1) + (16 * s2 + 8 * sec) * 384)
    KG = {0: (15,), 1: (16,), 2: (18,), 3: (20,), 4: (22,), 5: (24,), 6: (26,), 7: (28,), 8: (30,), 9: (32,), 10: (34,), 11: (35,)}
    VG = {0: (15, 15), 1: (16, 17), 2: (18, 19), 3: (20, 21), 4: (22, 23), 5: (24, 24), 6: (25, 26), 7: (27, 28),
          8: (29, 30), 9: (31, 32), 10: (33, 34), 11: (35, 36)}

    def reads_for(self, kind, own):
        res = []
        tab = self.KG if kind == 'K' else self.VG
        for f in range(12):
            for sec, g in enumerate(tab[f]):
                if (g >= 24) == own:
                    ins = self.kread(f) if kind == 'K' else self.vread(f, sec)
                    res.append((g - 24 if own else g, ins))
        if self.o['no_dsread']: return []
        return res

    def slot_advance(self, sreg):
        return [salu("s_add_u32", sreg, sreg, 2 * TILE), scmp("s_cmp_ge_u32", sreg, RINGEND),
                csel(sT0, NSLOT * TILE, 0), salu("s_sub_u32", sreg, sreg, sT0)]

    def kv_issue(self, kind, slotreg, tag):
        o = self.o
        if kind == 'K': vd, srd, off = vKd, sK, sKoff
        else: vd, srd, off = vVd, sV, sVoff
        m0 = salu("s_add_u32", "m0", slotreg, sW3072)
        ps = [dma(vd[j], srd, off, 1024 * j, tag, o['pol_kv']) for j in range(3)]
        adv = salu("s_add_u32", off, off, TILE)
        if o['no_dma']: ps = []
        return m0, ps, adv

    def q_issue(self, tag):
        o = self.o
        m0 = salu("s_mov_b32", "m0", sQm0, scc=False)
        ps = [dma(vKd[j], sQ, sQoff, 1024 * j, tag, o['pol_q']) for j in range(3)]
        adv = [salu("s_add_u32", sQoff, sQoff, 3072), salu("s_add_u32", sQm0, sQm0, 3072)]
        if o['no_dma']: ps = []
        return m0, ps, adv

    def stamp_pre(self):
        if self.o['stamps'] is not True: return []
        return [raw("s_memtime s[40:41]", 'misc')]
    def stamp_post(self):
        if self.o['stamps'] is not True: return []
        return [raw("s_mov_b32 m0, s45", 'misc'), nop(0),
                raw("v_writelane_b32 v248, s40, m0", 'misc'), raw("v_writelane_b32 v249, s46, m0", 'misc'),
                raw("s_memtime s[46:47]", 'misc'), raw("s_add_u32 s45, s45, s48", 'salu', w=['scc'])]
    def stamp_full(self):
        if self.o['stamps'] is not True: return []
        return self.stamp_pre() + [Wait(lg=0)] + self.stamp_post()

    def phase(self, kind, par, *, mfmas=True, stream=None, first=False, next_reads=True, own_reads=True,
              qgroups=0, qreads=False, pre=(), name="", check=None, issue=True, extra_fixed=()):
        o = self.o
        gb = o['gb']
        NG = 24
        fixed = [[] for _ in range(NG)]
        prewait = {}
        mf = []
        if kind == 'A':
            for s in range(12):
                for u in range(2):
                    d = Sreg(par ^ 1, u)
                    mf.append(mfma(d, Frag(s), Qreg(u, s), 0 if s == 0 else d))
        else:
            for s2 in range(2):
                for t in range(6):
                    for u in range(2):
                        d = Oreg(t, u)
                        mf.append(mfma(d, Frag(6 * s2 + t), Preg(par, u, s2), 0 if (first and s2 == 0) else d))
        mykind = 'K' if kind == 'A' else 'V'
        nxkind = 'V' if kind == 'A' else 'K'
        if own_reads:
            for g, ins in self.reads_for(mykind, True): fixed[g].append(ins)
        for g in (0, 4, 8, 12):
            prewait[g] = Wait(lg='auto')
        slotreg = sKslot if kind == 'A' else sVslot
        bar = [Wait(lg=0, vm=lambda c, d=(0 if kind == 'A' else 1): ('it', c['p0'] + self._pidx(c, name) + 1)), barrier()]
        bar = self.stamp_pre() + bar + self.stamp_post()
        nbar = len(bar)
        fixed[gb] = bar + fixed[gb]
        if next_reads:
            for g, ins in self.reads_for(nxkind, False): fixed[g].append(ins)
        if issue:
            m0, ps, adv = self.kv_issue(nxkind, slotreg, lambda c: ('it', c['p0'] + self._pidx(c, name) + 5))
            kg = o['kv_gaps']
            fixed[kg[0] - 1].append(m0)
            if o['no_mfma'] or not mfmas: fixed[kg[0] - 1].append(nop(0))
            for g, p in zip(kg, ps): fixed[g].append(p)
            fixed[min(23, kg[-1] + 1)].append(adv)
        if kind == 'A':
            fixed[8].append(valu("v_add_u32", vVe, sVslot, vVl))
            fixed[9].append(valu("v_xor_b32", vVo, 64, vVe))
            for i, x in enumerate(self.slot_advance(sKslot)): fixed[min(23, o['kv_gaps'][0] + 1 + i)].append(x)
        else:
            fixed[7].append(valu("v_add_u32", vKa[0], sKslot, vKl))
            fixed[8].append(valu("v_xor_b32", vKa[1], 32, vKa[0]))
            fixed[9].append(valu("v_xor_b32", vKa[2], 64, vKa[0]))
            fixed[10].append(valu("v_xor_b32", vKa[3], 0x60, vKa[0]))
            for i, x in enumerate(self.slot_advance(sVslot)): fixed[min(23, o['kv_gaps'][0] + 1 + i)].append(x)
        qg = o['q_gaps']
        for n in range(qgroups):
            m0, ps, adv = self.q_issue(lambda c, n=n: ('q', c['blk'] + 1))
            off = 0 if n == 0 else 6
            fixed[qg[0] - 1 + off].append(m0)
            if o['no_mfma'] or not mfmas: fixed[qg[0] - 1 + off].append(nop(0))
            for g, p in zip(qg, ps): fixed[g + off].append(p)
            for x in adv: fixed[qg[-1] + off].append(x)
        if qreads:
            qa = qreads
            lst = []
            for s in range(12):
                for u in range(2):
                    lst.append(dsread("ds_read_b128", Qreg(u, s), qa[s & 3], 128 * (s >> 2) + 12288 * u))
            if not o['no_dsread']:
                for i, x in enumerate(lst): fixed[i].append(x)
        for g, x in extra_fixed: fixed[g].append(x)
        stream = list(stream or [])
        g0 = 0
        if stream and isinstance(stream[0], int):
            g0 = stream.pop(0)
        cap = 6.0
        free = [max(0.25, cap - sum(i.cost for i in fixed[g] if i.kind != 'misc')) if g >= g0 else 0.0 for g in range(NG)]
        tot = sum(i.cost for i in stream)
        totfree = sum(free)
        out = []
        out += list(pre)
        pos = 0
        cum = 0.0
        used = 0.0
        for g in range(NG):
            if g in prewait and own_reads is not None: out.append(prewait[g])
            if mfmas and not o['no_mfma']: out.append(mf[g])
            cum += free[g]
            target = tot * cum / totfree if totfree else 0
            mine = []
            while pos < len(stream) and (used + 0.5 * stream[pos].cost <= target or g == NG - 1):
                mine.append(stream[pos]); used += stream[pos].cost; pos += 1
            fx = fixed[g]
            if g == gb:
                out += fx[:nbar]; fx = fx[nbar:]
            a, b = list(fx), mine
            while a or b:
                if b: out.append(b.pop(0))
                if a: out.append(a.pop(0))
        if check is not None:
            out += check
        return [comment(f"---- phase {name}")] + out

    def _pidx(self, c, name):
        return c['pidx']


def build(path, **kw):
    g = Gen(**kw)
    o = g.o
    c = (192 ** -0.5) * math.log2(math.e)
    g.negC = f"0x{f32bits(-c):08x}"
    secs = {}

    st = []
    st += [scmp("s_cmp_ge_u32", "s2", 256), raw("s_cbranch_scc1 L_end", 'branch')]
    st += [raw("s_load_dwordx4 s[4:7], s[0:1], 0", 'smem', w=["s[4:7]"]),
           raw("s_load_dwordx4 s[8:11], s[0:1], 16", 'smem', w=["s[8:11]"])]
    lane, wv = V(1), V(2)
    st += [valu("v_and_b32", lane, 63, V(0)), valu("v_lshrrev_b32", wv, 6, V(0)), nop(0),
           raw("v_readfirstlane_b32 s44, v2", 'valu', w=['s44'], r=['v2'])]
    st += [raw("s_waitcnt lgkmcnt(0)", 'misc')]
    st += [salu("s_mov_b32", S(16), S(10), scc=False), salu("s_mov_b32", S(17), S(11), scc=False),
           salu("s_mov_b32", S(12), S(8), scc=False), salu("s_mov_b32", S(13), S(9), scc=False),
           salu("s_mov_b32", S(8), S(6), scc=False), salu("s_mov_b32", S(9), S(7), scc=False)]
    for b in (4, 8, 12, 16):
        st += [salu("s_mov_b32", S(b + 2), TENSOR, scc=False), salu("s_mov_b32", S(b + 3), "0x20000", scc=False)]
    st += [salu("s_mov_b32", sC, f"0x{f32bits(c):08x}", scc=False), salu("s_mov_b32", sThr, f"0x{f32bits(o['thr']):08x}", scc=False)]
    st += [salu("s_mul_i32", sW3072, sWave, 3072, scc=False), salu("s_mul_i32", sQreg, sWave, QREG, scc=False)]
    if o['pair_map']:
        st += [salu("s_lshr_b32", sT0, "s2", 4), salu("s_lshl_b32", sT0, sT0, 3), salu("s_and_b32", sT1, "s2", 7),
               salu("s_add_u32", sT0, sT0, sT1), salu("s_lshr_b32", sT1, "s2", 3), salu("s_and_b32", sT1, sT1, 1)]
    else:
        st += [salu("s_lshr_b32", sT0, "s2", 1), salu("s_and_b32", sT1, "s2", 1)]
    st += [salu("s_mul_i32", sT0, sT0, HEADB, scc=False)]
    st += [salu("s_add_u32", sKoff, sT0, sW3072), salu("s_mov_b32", sVoff, sKoff, scc=False),
           salu("s_add_u32", sNext, sKoff, 128 * HEADB)]
    st += [salu("s_mul_i32", sT1, sT1, 4 * QREG, scc=False), salu("s_add_u32", sT0, sT0, sT1),
           salu("s_add_u32", sQoff, sT0, sQreg), salu("s_mov_b32", sOoff, sQoff, scc=False),
           salu("s_mov_b32", sQm0, sQreg, scc=False)]
    t0, t1, t2, t3, t4 = V(3), V(4), V(5), V(6), V(7)
    hi, n31 = V(8), V(9)
    st += [valu("v_lshrrev_b32", hi, 5, lane), valu("v_and_b32", n31, 31, lane), valu("v_lshlrev_b32", vLane16, 4, lane)]
    st += [salu("s_and_b32", sT2, sWave, 1), salu("s_lshl_b32", sT2, sT2, 2)]
    for j in range(3):
        st += [valu("v_add_u32", t0, 64 * j, lane), valu("v_mul_u32_u24", t0, 2731, t0), valu("v_lshrrev_b32", t0, 16, t0),
               valu("v_lshrrev_b32", t1, 1, t0),
               valu("v_or_b32", t2, sT2, t1), valu("v_xor_b32", t2, t2, lane), valu("v_lshlrev_b32", vKd[j], 4, t2),
               valu("v_and_b32", t2, 1, t1), valu("v_lshlrev_b32", t2, 2, t2), valu("v_xor_b32", t2, t2, lane),
               valu("v_lshlrev_b32", vVd[j], 4, t2),
               valu("v_xor_b32", t2, t0, lane), valu("v_lshlrev_b32", t2, 4, t2), valu("v_add_u32", t2, 1024 * j, t2),
               valu("v_add_u32", vOr[j], sQreg, t2)]
    st += [valu("v_mul_u32_u24", t0, 384, n31), valu("v_lshrrev_b32", t1, 1, n31), valu("v_and_b32", t2, 7, t1),
           valu("v_xor_b32", t2, t2, hi), valu("v_lshlrev_b32", t2, 4, t2), valu("v_add_u32", vKl, t0, t2)]
    st += [valu("v_and_b32", t2, 3, t1), valu("v_or_b32", t2, sT2, t2), valu("v_xor_b32", t2, t2, hi),
           valu("v_lshlrev_b32", t2, 4, t2), valu("v_add_u32", t2, t0, t2), valu("v_add_u32", vQa0, sQreg, t2)]
    st += [valu("v_lshlrev_b32", t2, 1, hi), valu("v_and_b32", t3, 7, n31), valu("v_xor_b32", t2, t2, t3),
           valu("v_lshlrev_b32", t2, 4, t2), valu("v_add_u32", t2, t0, t2), valu("v_add_u32", vOw, sQreg, t2)]
    st += [valu("v_bfe_u32", t0, lane, 2, 2),
           valu("v_lshlrev_b32", t1, 2, hi), valu("v_add_u32", t1, t1, t0), valu("v_mul_u32_u24", t1, 384, t1),
           valu("v_lshrrev_b32", t2, 1, t0), valu("v_lshlrev_b32", t2, 6, t2), valu("v_add_u32", t1, t1, t2),
           valu("v_and_b32", t2, 1, lane), valu("v_lshlrev_b32", t2, 5, t2), valu("v_add_u32", t1, t1, t2),
           valu("v_bfe_u32", t2, lane, 4, 1), valu("v_lshlrev_b32", t2, 4, t2), valu("v_add_u32", t1, t1, t2),
           valu("v_bfe_u32", t2, lane, 1, 1), valu("v_lshlrev_b32", t2, 3, t2), valu("v_add_u32", vVl, t1, t2)]
    st += [valu("v_mov_b32", lsum[0], 0), valu("v_mov_b32", lsum[1], 0)]
    if o['stamps']:
        st += [valu("v_mov_b32", V(248), 0), valu("v_mov_b32", V(249), 0), raw("s_memtime s[42:43]", 'misc'),
               raw("s_memrealtime s[50:51]", 'misc'), raw("s_waitcnt lgkmcnt(0)", 'misc'),
               salu("s_mov_b32", S(45), 63, scc=False), salu("s_mov_b32", S(48), 0, scc=False), salu("s_mov_b32", S(46), 0, scc=False)]
    def issue_item(kind, slot, n):
        vd, srd, off = (vKd, sK, sKoff) if kind == 'K' else (vVd, sV, sVoff)
        r = [salu("s_add_u32", "m0", sW3072, RING0 + slot * TILE), nop(0)]
        r += [dma(vd[j], srd, off, 1024 * j, ('it', n), o['pol_kv']) for j in range(3)] if not o['no_dma'] else []
        r += [salu("s_add_u32", off, off, TILE)]
        return r
    st += issue_item('K', 0, 0)
    for gq in range(8):
        m0, ps, adv = g.q_issue(('q', 0))
        st += [m0, nop(0)] + ps + adv
    st += issue_item('K', 2, 2) + issue_item('V', 3, 3) + issue_item('K', 4, 4)
    st += [salu("s_add_u32", sQoff, sOoff, 128 * HEADB), salu("s_mov_b32", sQm0, sQreg, scc=False)]
    st += [salu("s_mov_b32", sKslot, RING0, scc=False), salu("s_mov_b32", sVslot, RING0 + TILE, scc=False),
           salu("s_mov_b32", sBlk, 0, scc=False)]
    st += [valu("v_add_u32", vKa[0], sKslot, vKl), valu("v_xor_b32", vKa[1], 32, vKa[0]),
           valu("v_xor_b32", vKa[2], 64, vKa[0]), valu("v_xor_b32", vKa[3], 0x60, vKa[0])]
    qa = [V(250), V(251), V(252), V(253)]
    def qaddr():
        return [valu("v_mov_b32", qa[0], vQa0), valu("v_xor_b32", qa[1], 32, vQa0),
                valu("v_xor_b32", qa[2], 64, vQa0), valu("v_xor_b32", qa[3], 0x60, vQa0)]
    st += qaddr()
    st += [Wait(lg=0, vm=lambda c: [('it', 0), ('q', 0)]), barrier()]
    if not o['no_dsread']:
        for s in range(12):
            for u in range(2):
                st.append(dsread("ds_read_b128", Qreg(u, s), qa[s & 3], 128 * (s >> 2) + 12288 * u))
                if (2 * s + u) % 8 == 7: st.append(Wait(lg='auto'))
        st.append(Wait(lg=0))
        for f in range(5): st.append(g.kread(f))
    secs['setup'] = st

    secs['Am1'] = g.phase('A', 1, stream=None, next_reads=False, name="A(-1)")
    secs['Bm1'] = g.phase('B', 1, mfmas=False, own_reads=False,
                          stream=[0, nop(7), nop(3)] + g.max_ops(0) + g.unit_ops(0, [(0, 0), (1, 0)]), name="B(-1)")

    rare_sites = []
    def iteration(par, name, first=False, qgroupsA=0, qreads=False, newblock=False, preA=()):
        lab = f"L_ret_{name}"
        rare_sites.append((par, name, lab))
        chk = g.check_ops(par)
        strA = g.unit_ops(par, [(0, 1), (1, 1)]) + ([] if o['no_valu'] else chk)
        post = []
        if not o['no_valu']:
            post = [raw(f"s_cbranch_vccnz L_rare_{name}", 'branch', r=['vcc']), label(lab),
                    valu("v_add_f32", lsum[0], lsum[0], sig[0]), valu("v_add_f32", lsum[1], lsum[1], sig[1])]
        a = g.phase('A', par, stream=strA, qgroups=qgroupsA, name=f"A {name}", check=post, pre=preA)
        units = g.unit_ops(par ^ 1, [(0, 0), (1, 0)])
        if newblock:
            strB = [2] + g.max_ops(par ^ 1) + units
        else:
            strB = [2] + units
        extra = []
        if qreads:
            extra = [(0, x) for x in []]
        b = g.phase('B', par, stream=strB, first=first, qreads=(qa if qreads else False), name=f"B {name}",
                    pre=(qaddr() + [Wait(vm=lambda c: ('q', c['blk'] + 1))]) if qreads else ())
        return a, b

    a0, b0 = iteration(0, "b0e", first=True, qgroupsA=2)
    a1, b1 = iteration(1, "b0o")
    secs['body0'] = (a0, b0, a1, b1)
    pre = [scmp("s_cmp_eq_u32", sBody, 6), csel(sKoff, sNext, sKoff)]
    a0, b0 = iteration(0, "ste", qgroupsA=1, preA=pre)
    a1, b1 = iteration(1, "sto")
    secs['steady'] = (a0, b0, a1, b1)
    pre = [salu("s_mov_b32", sVoff, sNext, scc=False)]
    a0, b0 = iteration(0, "b7e", qreads=True, preA=pre)
    a1, b1 = iteration(1, "b7o", newblock=True)
    secs['body7'] = (a0, b0, a1, b1)

    ep = [comment("---- epilogue")] + g.stamp_full()
    ep += [nop(1), swap32(lsum[0], lsum[1]), valu("v_add_f32", vR[0], lsum[0], lsum[1]),
           valu("v_rcp_f32", vR[0], vR[0], trans=True), nop(0), valu("v_mov_b32", vR2[0], vR[0]),
           nop(1), swap32(vR[0], vR2[0]),
           valu("v_mov_b32", lsum[0], 0), valu("v_mov_b32", lsum[1], 0)]
    wa = [T[0], T[1], T[2], T[3]]
    ep += [valu("v_mov_b32", wa[0], vOw), valu("v_xor_b32", wa[1], 16, vOw), valu("v_xor_b32", wa[2], 64, vOw),
           valu("v_xor_b32", wa[3], 0x50, vOw)]
    Sfree = V(32, 32)
    Wb = [Sfree[0:8], Sfree[8:16]]
    tmp = Sfree[16:32]
    nt = 0
    rb = [V(204, 4), V(208, 4), V(196, 4), V(212 + 4, 4)]
    def conv(t, u):
        nonlocal nt
        r = []
        src = Oreg(t, u)
        rin = vR if u == 0 else vR2
        if src.p == 'a':
            for i in range(16): r.append(valu("v_accvgpr_read_b32", tmp[i], src[i]))
            src = tmp
        W = Wb[nt & 1]; nt += 1
        for i in range(0, 16, 2):
            r.append(valu("v_pk_mul_f32", src[i:i + 2], src[i:i + 2], rin, mods="op_sel_hi:[1,0]"))
        for i in range(0, 16, 2):
            r.append(valu("v_cvt_pk_bf16_f32", W[i // 2], src[i], src[i + 1]))
        for k in range(2):
            r.append(dswrite("ds_write_b128", wa[2 * (t & 1) + k], W[4 * k:4 * k + 4], 128 * (t >> 1) + 12288 * u))
        return r
    def readback(i):
        gq, j = divmod(i, 3)
        return dsread("ds_read_b128", rb[i % 4], vOr[j], 3072 * gq)
    def store(i):
        r = []
        if i % 4 == 0 and i > 0: r.append(salu("s_add_u32", sOoff, sOoff, 4096))
        if not o['no_store']:
            r.append(vstore(rb[i % 4], vLane16, sO, sOoff, 1024 * (i % 4), tag=('o',), pol=o['pol_o']))
        return r
    for t in range(6): ep += conv(t, 0)
    ep += [Wait(lg=0)]
    pieces = list(range(12))
    for t in range(6):
        cv = conv(t, 1)
        i0, i1 = 2 * t, 2 * t + 1
        ep += [readback(i0), readback(i1)]
        ep += cv[:-2]
        ep += [Wait(lg='auto')] + store(i0) + store(i1)
        ep += cv[-2:]
    ep += [Wait(lg=0)]
    for i in range(12, 24, 4):
        ep += [readback(i), readback(i + 1), readback(i + 2), readback(i + 3)]
        for k in range(4):
            ep += [Wait(lg='auto')] + store(i + k)
    ep += g.stamp_full()
    ep += [salu("s_add_u32", sOoff, sOoff, 128 * HEADB - 5 * 4096),
           salu("s_add_u32", sNext, sNext, 128 * HEADB),
           salu("s_add_u32", sQoff, sOoff, 128 * HEADB), salu("s_mov_b32", sQm0, sQreg, scc=False)]
    secs['epi'] = ep

    def rare(par):
        r = [comment(f"rare rescale path parity {par}")]
        for u in range(2):
            s = Sreg(par, u)
            d = vX0 if u == 0 else vX1
            r.append(valu("v_max3_f32", d, s[0], s[1], s[2]))
            for i in range(3, 15, 2): r.append(valu("v_max3_f32", d, d, s[i], s[i + 1]))
            r.append(valu("v_max_f32", d, d, s[15]))
        r += [nop(1), swap32(vX0, vX1), valu("v_max_f32", vX0, vX0, vX1), valu("v_max_f32", vX0, 0, vX0),
              valu("v_mov_b32", vX1, vX0), nop(1), swap32(vX0, vX1)]
        dl = [vX0, vX1]
        ff = [T[0], T[1]]
        for u in range(2):
            r += [valu("v_sub_f32", ff[u], 0, dl[u]), valu("v_exp_f32", ff[u], ff[u], trans=True), nop(0),
                  valu("v_sub_f32", nmc[u], nmc[u], dl[u]), valu("v_mul_f32", lsum[u], lsum[u], ff[u])]
            for t in range(6):
                ot = Oreg(t, u)
                for i in range(16):
                    if ot.p == 'v':
                        r.append(valu("v_mul_f32", ot[i], ot[i], ff[u]))
                    else:
                        r += [valu("v_accvgpr_read_b32", T[2], ot[i]), valu("v_mul_f32", T[2], T[2], ff[u]),
                              valu("v_accvgpr_write_b32", ot[i], T[2])]
        for u in range(2):
            s = Sreg(par, u)
            for i in range(16): r.append(valu("v_sub_f32", s[i], s[i], dl[u]))
            for i in range(0, 16, 2):
                h, k = divmod(i // 2, 4)
                r += [valu("v_exp_f32", T[2], s[i], trans=True), valu("v_exp_f32", T[3], s[i + 1], trans=True), nop(0)]
                if i == 0: r += [valu("v_add_f32", sig[u], T[2], T[3])]
                else: r += [valu("v_add_f32", sig[u], sig[u], T[2]), valu("v_add_f32", sig[u], sig[u], T[3])]
                r += [valu("v_cvt_pk_bf16_f32", Preg(par, u, h)[k], T[2], T[3])]
        r += [nop(1)]
        return r
    rare_code = []
    for par, name, lab in rare_sites:
        pass
    rsecs = {}
    for par in range(2):
        body = rare(par)
        names = [(n, l) for p, n, l in rare_sites if p == par]
        code = [label(f"L_rare_{n}") for n, l in names] + body
        code += [scmp("s_cmp_eq_u32", sBody, 0), raw(f"s_cbranch_scc1 {names[0][1]}", 'branch'),
                 scmp("s_cmp_eq_u32", sBody, 7), raw(f"s_cbranch_scc1 {names[2][1]}", 'branch'),
                 raw(f"s_branch {names[1][1]}", 'branch')]
        rsecs[par] = code

    def flat(t): return [x for p in t for x in p]
    L = []
    L += secs['setup'] + secs['Am1'] + secs['Bm1']
    blk_head = [label("L_block"), salu("s_mov_b32", sBody, 0, scc=False)]
    if o['stamps']:
        sb = o.get('stamp_blk', 1)
        blk_head += [scmp("s_cmp_eq_u32", sBlk, sb), csel(S(45), 0, 63), csel(S(48), 1, 0)]
    st_head = [salu("s_mov_b32", sBody, 1, scc=False), raw(f".p2align {int(math.log2(o['align']))}", 'comment'), label("L_steady")]
    st_head[1].states = 0
    st_tail = [salu("s_add_u32", sBody, sBody, 1), scmp("s_cmp_lt_u32", sBody, 7), raw("s_cbranch_scc1 L_steady", 'branch')]
    blk_tail = [salu("s_add_u32", sBlk, sBlk, 1), scmp("s_cmp_lt_u32", sBlk, NROUND), raw("s_cbranch_scc1 L_block", 'branch')]
    fin = [raw("s_waitcnt vmcnt(0)", 'misc')]
    if o['stamps']:
        fin += [raw(x, 'misc') for x in f'''s_memtime s[40:41]
s_memrealtime s[46:47]
s_load_dwordx2 s[52:53], s[0:1], 40
s_waitcnt lgkmcnt(0)
s_sub_u32 s40, s40, s42
s_sub_u32 s46, s46, s50
v_writelane_b32 v248, s40, 62
v_writelane_b32 v249, s46, 62
v_writelane_b32 v248, s42, 61
v_writelane_b32 v249, s50, 61
s_getreg_b32 s40, hwreg(HW_REG_XCC_ID)
s_getreg_b32 s46, hwreg(HW_REG_HW_ID)
s_nop 1
v_writelane_b32 v248, s40, 60
v_writelane_b32 v249, s46, 60
s_mov_b32 s54, 0x1000000
s_mov_b32 s55, 0x20000
s_lshl_b32 s40, s2, 2
s_add_u32 s40, s40, s44
s_lshl_b32 s40, s40, 9
v_lshrrev_b32 v1, 2, v241
s_nop 4
buffer_store_dword v248, v1, s[52:55], s40 offen
buffer_store_dword v249, v1, s[52:55], s40 offen offset:256
s_waitcnt vmcnt(0)'''.split("\n")]
    fin += [label("L_end"), raw("s_endpgm", 'misc')]

    trace = []
    def run(sec, ctx):
        for i in sec: trace.append((i, ctx))
    run(secs['setup'], dict(p0=0, pidx=0, blk=-1))
    run(secs['Am1'], dict(p0=0, pidx=0, blk=-1))
    run(secs['Bm1'], dict(p0=0, pidx=1, blk=-1))
    p = 2
    for blk in range(NROUND):
        run(blk_head, {})
        for ph in secs['body0']:
            run(ph, dict(p0=0, pidx=p, blk=blk)); p += 1
        run(st_head, {})
        for b in range(6):
            for ph in secs['steady']:
                run(ph, dict(p0=0, pidx=p, blk=blk)); p += 1
            run(st_tail, {})
        for ph in secs['body7']:
            run(ph, dict(p0=0, pidx=p, blk=blk)); p += 1
        run(secs['epi'], dict(blk=blk))
        run(blk_tail, {})
    errs = solve_waits(trace)
    errs += check_hazards(trace)
    for par, name, lab in rare_sites:
        secname = {'b0': 'body0', 'st': 'steady', 'b7': 'body7'}[name[:2]]
        seq = flat(secs[secname])
        idx = [k for k, i in enumerate(seq) if i.kind == 'label' and i.text == lab + ":"]
        if idx:
            k = idx[0]
            t2 = [(i, {}) for i in seq[max(0, k - 40):k] + rsecs[par] + seq[k:k + 40]]
            errs += check_hazards(t2)
    if errs:
        for e in sorted(set(errs)): print("ERR", e)
        raise SystemExit("generation errors")

    L += blk_head + flat(secs['body0']) + st_head + flat(secs['steady']) + st_tail + flat(secs['body7']) + secs['epi'] + blk_tail + fin
    if not o['no_valu']: L += rsecs[0] + rsecs[1]
    hdr = f"""; Kernarg layout (48 bytes): q(0) k(8) v(16) out(24) debug(32) ws(40)
; @launch grid=(256,1,1) block=(256,1,1) lds={LDS_BYTES}
.amdgcn_target "amdgcn-amd-amdhsa--gfx950"
.text
.globl {KNAME}
.p2align 8
.type {KNAME},@function
{KNAME}:
"""
    ftr = f"""
.section .rodata,"a"
.p2align 6
.amdhsa_kernel {KNAME}
  .amdhsa_next_free_vgpr 448
  .amdhsa_next_free_sgpr 64
  .amdhsa_accum_offset 256
  .amdhsa_group_segment_fixed_size 0
  .amdhsa_kernarg_size 48
  .amdhsa_user_sgpr_count 2
  .amdhsa_user_sgpr_kernarg_segment_ptr 1
  .amdhsa_system_sgpr_workgroup_id_x 1
  .amdhsa_float_denorm_mode_32 3
.end_amdhsa_kernel
"""
    body = []
    for i in L:
        if i.kind == 'label': body.append(i.text)
        elif getattr(i, 'dead', False): continue
        else: body.append("    " + i.text)
    open(path, "w").write(hdr + "\n".join(body) + "\n" + ftr)
    n = sum(1 for i in L if i.states > 0)
    print(f"wrote {path}: {n} instructions")

if __name__ == "__main__":
    import ast
    path = sys.argv[1]
    kw = {}
    for a in sys.argv[2:]:
        k, v = a.split("=", 1)
        kw[k] = ast.literal_eval(v)
    build(path, **kw)
```

```python
import sys, math, struct
sys.path.insert(0, "gen")
from isa import *
from common import KNAME

def f32bits(x):
    return struct.unpack("<I", struct.pack("<f", x))[0]

DEFAULT = dict(
    gb=15,
    kv_gaps=(17, 19, 21),
    q_gaps=(9, 11, 13),
    o_rd_gap=1, o_st_gaps=(5, 6, 7),
    thr=1024.0,
    stamps=False,
    no_mfma=False, no_valu=False, no_dma=False, no_dsread=False, no_store=False,
    pol_q="", pol_kv="", pol_o="",
    setprio=None,
    pair_map=True,
    align=64,
)

NROUND = 4
TILE = 12288
QREG = 24576
RING0 = 4 * QREG
NSLOT = 5
RINGEND = RING0 + NSLOT * TILE
LDS_BYTES = 163840
HEADB = 196608
TENSOR = 100663296

def Sreg(par, u): return V(32 * par + 16 * u, 16)
def Oreg(t, u):
    return V(64 + 16 * (2 * t + u), 16) if t < 4 else A(16 * (2 * (t - 4) + u), 16)
def P00(par): return V(192 + 4 * par, 4)
P10 = V(200, 4); P01 = V(204, 4); P11 = V(208, 4)
def Preg(par, u, s2):
    if s2 == 0: return P00(par) if u == 0 else P10
    return P01 if u == 0 else P11
T = [V(212 + i) for i in range(8)]
vKa = [V(220 + i) for i in range(4)]
vKl, vVl, vVe, vVo = V(224), V(225), V(226), V(227)
vKd = [V(228 + i) for i in range(3)]
vVd = [V(231 + i) for i in range(3)]
nmc = [V(234), V(235)]
lsum = [V(236), V(237)]
sig = [V(238), V(239)]
vQa0, vLane16, vOw = V(240), V(241), V(242)
vOr = [V(243 + i) for i in range(3)]
vX0, vX1 = V(246), V(247)
vStamp = V(248)
vR = V(250, 2)
vR2 = V(252, 2)
def Qreg(u, s): return A(64 + 4 * (12 * u + s), 4)
def Frag(f): return A(160 + 4 * (f % 6), 4)
RB = [A(184 + 4 * j, 4) for j in range(3)]

sQ, sK, sV, sO = S(4, 4), S(8, 4), S(12, 4), S(16, 4)
sC, sThr, sW3072 = S(20), S(21), S(22)
sKslot, sVslot = S(23), S(24)
sKoff, sVoff, sQoff, sQm0, sOoff = S(25), S(26), S(27), S(28), S(29)
sBody, sBlk, sNext, sQreg = S(30), S(31), S(32), S(33)
sT0, sT1, sT2, sT3 = S(34), S(35), S(36), S(37)
sTm = S(40, 2); sTm0 = S(42, 2)
sWave = S(44)
sOdr = S(38)

class Gen:
    def __init__(self, **kw):
        self.o = dict(DEFAULT); self.o.update(kw)
        self.stamp_id = 0

    def unit_ops(self, par, units):
        o = self.o
        pairs = []
        for (u, h) in units:
            for k in range(4):
                pairs.append((u, h, k))
        F, E, Acc = [], [], []
        for n, (u, h, k) in enumerate(pairs):
            s = Sreg(par, u)
            a, b = s[8 * h + 2 * k], s[8 * h + 2 * k + 1]
            ta, tb = T[2 * (n % 3)], T[2 * (n % 3) + 1]
            F.append([valu("v_fma_f32", a, a, sC, nmc[u]), valu("v_fma_f32", b, b, sC, nmc[u])])
            E.append([valu("v_exp_f32", ta, a, trans=True), valu("v_exp_f32", tb, b, trans=True)])
            if h == 0 and k == 0:
                adds = [valu("v_add_f32", sig[u], ta, tb)]
            else:
                adds = [valu("v_add_f32", sig[u], sig[u], ta), valu("v_add_f32", sig[u], sig[u], tb)]
            Acc.append(adds + [valu("v_cvt_pk_bf16_f32", Preg(par, u, h)[k], ta, tb)])
        n = len(pairs)
        ops = []
        ops += F[0]
        if n > 1: ops += F[1]
        ops += E[0]
        for i in range(n):
            if i + 2 < n: ops += F[i + 2]
            if i + 1 < n: ops += E[i + 1]
            elif n == 1: ops += [nop(0)]
            ops += Acc[i]
        if o['no_valu']: return []
        return ops

    def max_ops(self, par):
        ops = []
        for u in range(2):
            s = Sreg(par, u)
            d = vX0 if u == 0 else vX1
            ops.append(valu("v_max3_f32", d, s[0], s[1], s[2]))
            for i in range(3, 15, 2):
                ops.append(valu("v_max3_f32", d, d, s[i], s[i + 1]))
            ops.append(valu("v_max_f32", d, d, s[15]))
        ops += [nop(1), swap32(vX0, vX1), valu("v_max_f32", vX0, vX0, vX1), valu("v_mov_b32", vX1, vX0),
                nop(1), swap32(vX0, vX1),
                valu("v_mul_f32", nmc[0], self.negC, vX0), valu("v_mul_f32", nmc[1], self.negC, vX1)]
        if self.o['no_valu']: return []
        return ops

    def check_ops(self, par):
        a = [valu("v_max_f32", vX0, sig[0], sig[1]), vcmp("v_cmp_lt_f32", sThr, vX0)]
        return a

    def kread(self, s):
        return dsread("ds_read_b128", Frag(s), vKa[s & 3], 128 * (s >> 2))
    def vread(self, f, sec):
        s2, t = divmod(f, 6)
        fr = Frag(f)
        return dsread("ds_read_b64_tr_b16", fr[2 * sec:2 * sec + 2], vVo if (t & 1) else vVe,
                      64 * (t & ~1) + (16 * s2 + 8 * sec) * 384)
    KG = {0: (15,), 1: (16,), 2: (18,), 3: (20,), 4: (22,), 5: (24,), 6: (26,), 7: (28,), 8: (30,), 9: (32,), 10: (34,), 11: (35,)}
    VG = {0: (15, 15), 1: (16, 17), 2: (18, 19), 3: (20, 21), 4: (22, 23), 5: (24, 24), 6: (25, 26), 7: (27, 28),
          8: (29, 30), 9: (31, 32), 10: (33, 34), 11: (35, 36)}

    def reads_for(self, kind, own):
        res = []
        tab = self.KG if kind == 'K' else self.VG
        for f in range(12):
            for sec, g in enumerate(tab[f]):
                if (g >= 24) == own:
                    ins = self.kread(f) if kind == 'K' else self.vread(f, sec)
                    res.append((g - 24 if own else g, ins))
        if self.o['no_dsread']: return []
        return res

    def slot_advance(self, sreg):
        return [salu("s_add_u32", sreg, sreg, 2 * TILE), scmp("s_cmp_ge_u32", sreg, RINGEND),
                csel(sT0, NSLOT * TILE, 0), salu("s_sub_u32", sreg, sreg, sT0)]

    def kv_issue(self, kind, slotreg, tag):
        o = self.o
        if kind == 'K': vd, srd, off = vKd, sK, sKoff
        else: vd, srd, off = vVd, sV, sVoff
        m0 = salu("s_add_u32", "m0", slotreg, sW3072)
        ps = [dma(vd[j], srd, off, 1024 * j, tag, o['pol_kv']) for j in range(3)]
        adv = salu("s_add_u32", off, off, TILE)
        if o['no_dma']: ps = []
        return m0, ps, adv

    def q_issue(self, tag):
        o = self.o
        m0 = salu("s_mov_b32", "m0", sQm0, scc=False)
        ps = [dma(vKd[j], sQ, sQoff, 1024 * j, tag, o['pol_q']) for j in range(3)]
        adv = [salu("s_add_u32", sQoff, sQoff, 3072), salu("s_add_u32", sQm0, sQm0, 3072)]
        if o['no_dma']: ps = []
        return m0, ps, adv

    def stamp_pre(self):
        if self.o['stamps'] is not True: return []
        return [raw("s_memtime s[40:41]", 'misc')]
    def stamp_post(self):
        if self.o['stamps'] is not True: return []
        return [raw("s_mov_b32 m0, s45", 'misc'), nop(0),
                raw("v_writelane_b32 v248, s40, m0", 'misc'), raw("v_writelane_b32 v249, s46, m0", 'misc'),
                raw("s_memtime s[46:47]", 'misc'), raw("s_add_u32 s45, s45, s48", 'salu', w=['scc'])]
    def stamp_full(self):
        if self.o['stamps'] is not True: return []
        return self.stamp_pre() + [Wait(lg=0)] + self.stamp_post()

    def phase(self, kind, par, *, mfmas=True, stream=None, first=False, next_reads=True, own_reads=True,
              qgroups=0, qreads=False, pre=(), name="", check=None, issue=True, extra_fixed=()):
        o = self.o
        gb = o['gb']
        NG = 24
        fixed = [[] for _ in range(NG)]
        prewait = {}
        mf = []
        if kind == 'A':
            for s in range(12):
                for u in range(2):
                    d = Sreg(par ^ 1, u)
                    mf.append(mfma(d, Frag(s), Qreg(u, s), 0 if s == 0 else d))
        else:
            for s2 in range(2):
                for t in range(6):
                    for u in range(2):
                        d = Oreg(t, u)
                        mf.append(mfma(d, Frag(6 * s2 + t), Preg(par, u, s2), 0 if (first and s2 == 0) else d))
        mykind = 'K' if kind == 'A' else 'V'
        nxkind = 'V' if kind == 'A' else 'K'
        if own_reads:
            for g, ins in self.reads_for(mykind, True): fixed[g].append(ins)
        for g in (0, 4, 8, 12):
            prewait[g] = Wait(lg='auto')
        slotreg = sKslot if kind == 'A' else sVslot
        bar = [Wait(lg=0, vm=lambda c, d=(0 if kind == 'A' else 1): ('it', c['p0'] + self._pidx(c, name) + 1)), barrier()]
        if o.get('nobar'): bar = bar[:1]
        bar = self.stamp_pre() + bar + self.stamp_post()
        nbar = len(bar)
        fixed[gb] = bar + fixed[gb]
        if next_reads:
            for g, ins in self.reads_for(nxkind, False): fixed[g].append(ins)
        if issue:
            m0, ps, adv = self.kv_issue(nxkind, slotreg, lambda c: ('it', c['p0'] + self._pidx(c, name) + 5))
            kg = o['kv_gaps']
            fixed[kg[0] - 1].append(m0)
            if o['no_mfma'] or not mfmas: fixed[kg[0] - 1].append(nop(0))
            for g, p in zip(kg, ps): fixed[g].append(p)
            fixed[min(23, kg[-1] + 1)].append(adv)
        if kind == 'A':
            fixed[8].append(valu("v_add_u32", vVe, sVslot, vVl))
            fixed[9].append(valu("v_xor_b32", vVo, 64, vVe))
            for i, x in enumerate(self.slot_advance(sKslot)): fixed[min(23, o['kv_gaps'][0] + 1 + i)].append(x)
        else:
            fixed[7].append(valu("v_add_u32", vKa[0], sKslot, vKl))
            fixed[8].append(valu("v_xor_b32", vKa[1], 32, vKa[0]))
            fixed[9].append(valu("v_xor_b32", vKa[2], 64, vKa[0]))
            fixed[10].append(valu("v_xor_b32", vKa[3], 0x60, vKa[0]))
            for i, x in enumerate(self.slot_advance(sVslot)): fixed[min(23, o['kv_gaps'][0] + 1 + i)].append(x)
        if qgroups:
            og, sg, qg = o['o_rd_gap'], o['o_st_gaps'], o['q_gaps']
            for j in range(3):
                fixed[og].append(dsread("ds_read_b128", RB[j], vOr[j], 0))
            for j in range(3):
                fixed[og + 1 + j].append(valu("v_add_u32", vOr[j], 3072, vOr[j]))
            w = Wait(lg='auto'); w.early = True
            fixed[sg[0]].append(w)
            for j in range(3):
                if not o['no_store']:
                    fixed[sg[j]].append(vstore(RB[j], vLane16, sO, sOdr, 1024 * j, tag=('o',), pol=o['pol_o']))
            fixed[sg[-1]].append(salu("s_add_u32", sOdr, sOdr, 3072))
            m0, ps, adv = self.q_issue(lambda c: ('q', c['blk'] + 1))
            fixed[qg[0] - 1].append(m0)
            if o['no_mfma'] or not mfmas: fixed[qg[0] - 1].append(nop(0))
            for g, p_ in zip(qg, ps): fixed[g].append(p_)
            for x in adv: fixed[qg[-1]].append(x)
        if qreads:
            qa = qreads
            lst = []
            for s in range(12):
                for u in range(2):
                    lst.append(dsread("ds_read_b128", Qreg(u, s), qa[s & 3], 128 * (s >> 2) + 12288 * u))
            if not o['no_dsread']:
                for i, x in enumerate(lst): fixed[i].append(x)
        for g, x in extra_fixed: fixed[g].append(x)
        stream = list(stream or [])
        g0 = 0
        if stream and isinstance(stream[0], int):
            g0 = stream.pop(0)
        CAP = o.get('cap', 24)
        def cyc(i):
            if i.kind in ('misc',): return 0
            if i.kind == 'trans' or i.kind == 'perm': return 8
            if i.kind in ('dma', 'vst'): return o.get('dmacost', 16)
            if i.kind == 'nop': return 4 * i.states
            return 4
        order = {'wait': 0, 'barrier': 0, 'misc': 0, 'dsr': 1, 'dsw': 1, 'dma': 2, 'vst': 2, 'salu': 3, 'nop': 3}
        fcost = [sum(cyc(i) for i in fixed[g]) + (4 if (g + 1) in prewait else 0) for g in range(NG)]
        free = [max(1.0, CAP - fcost[g]) if g >= g0 else 0.0 for g in range(NG)]
        tot = sum(cyc(i) for i in stream)
        totfree = sum(free)
        out = []
        out += list(pre)
        pos = 0
        cum = 0.0
        used = 0.0
        last = max([g for g in range(NG) if free[g] > 0] + [0])
        for g in range(NG):
            if g in prewait: out.append(prewait[g])
            if mfmas and not o['no_mfma']: out.append(mf[g])
            cum += free[g]
            target = tot * cum / totfree if totfree else 0
            mine = []
            load = fcost[g]
            while pos < len(stream) and g >= g0:
                x = stream[pos]
                nb = getattr(x, 'nb', None)
                if nb is not None and g < nb: break
                c = cyc(x)
                if g != NG - 1:
                    if used + 0.5 * c > target: break
                    if load + c > CAP and mine: break
                mine.append(x); used += c; load += c; pos += 1
            fx = fixed[g]
            head = []
            if g == gb:
                head = fx[:nbar]; fx = fx[nbar:]
            cls = lambda i: order.get(i.kind, 4)
            pre_items = [i for i in fx if getattr(i, 'early', False)]
            rest = sorted([i for i in fx if not getattr(i, 'early', False)], key=cls)
            out += head + pre_items + rest + mine
        if check is not None:
            out += check
        return [comment(f"---- phase {name}")] + out

    def _pidx(self, c, name):
        return c['pidx']


def build(path, **kw):
    g = Gen(**kw)
    o = g.o
    c = (192 ** -0.5) * math.log2(math.e)
    g.negC = f"0x{f32bits(-c):08x}"
    secs = {}

    st = []
    st += [scmp("s_cmp_ge_u32", "s2", 256), raw("s_cbranch_scc1 L_end", 'branch')]
    st += [raw("s_load_dwordx4 s[4:7], s[0:1], 0", 'smem', w=["s[4:7]"]),
           raw("s_load_dwordx4 s[8:11], s[0:1], 16", 'smem', w=["s[8:11]"])]
    lane, wv = V(1), V(2)
    st += [valu("v_and_b32", lane, 63, V(0)), valu("v_lshrrev_b32", wv, 6, V(0)), nop(0),
           raw("v_readfirstlane_b32 s44, v2", 'valu', w=['s44'], r=['v2'])]
    st += [raw("s_waitcnt lgkmcnt(0)", 'misc')]
    st += [salu("s_mov_b32", S(16), S(10), scc=False), salu("s_mov_b32", S(17), S(11), scc=False),
           salu("s_mov_b32", S(12), S(8), scc=False), salu("s_mov_b32", S(13), S(9), scc=False),
           salu("s_mov_b32", S(8), S(6), scc=False), salu("s_mov_b32", S(9), S(7), scc=False)]
    for b in (4, 8, 12, 16):
        st += [salu("s_mov_b32", S(b + 2), TENSOR, scc=False), salu("s_mov_b32", S(b + 3), "0x20000", scc=False)]
    st += [salu("s_mov_b32", sC, f"0x{f32bits(c):08x}", scc=False), salu("s_mov_b32", sThr, f"0x{f32bits(o['thr']):08x}", scc=False)]
    st += [salu("s_mul_i32", sW3072, sWave, 3072, scc=False), salu("s_mul_i32", sQreg, sWave, QREG, scc=False)]
    if o['pair_map']:
        st += [salu("s_lshr_b32", sT0, "s2", 4), salu("s_lshl_b32", sT0, sT0, 3), salu("s_and_b32", sT1, "s2", 7),
               salu("s_add_u32", sT0, sT0, sT1), salu("s_lshr_b32", sT1, "s2", 3), salu("s_and_b32", sT1, sT1, 1)]
    else:
        st += [salu("s_lshr_b32", sT0, "s2", 1), salu("s_and_b32", sT1, "s2", 1)]
    st += [salu("s_mul_i32", sT0, sT0, HEADB, scc=False)]
    st += [salu("s_add_u32", sKoff, sT0, sW3072), salu("s_mov_b32", sVoff, sKoff, scc=False),
           salu("s_add_u32", sNext, sKoff, 128 * HEADB)]
    st += [salu("s_mul_i32", sT1, sT1, 4 * QREG, scc=False), salu("s_add_u32", sT0, sT0, sT1),
           salu("s_add_u32", sQoff, sT0, sQreg), salu("s_mov_b32", sOoff, sQoff, scc=False),
           salu("s_mov_b32", sQm0, sQreg, scc=False)]
    t0, t1, t2, t3, t4 = V(3), V(4), V(5), V(6), V(7)
    hi, n31 = V(8), V(9)
    st += [valu("v_lshrrev_b32", hi, 5, lane), valu("v_and_b32", n31, 31, lane), valu("v_lshlrev_b32", vLane16, 4, lane)]
    st += [salu("s_and_b32", sT2, sWave, 1), salu("s_lshl_b32", sT2, sT2, 2)]
    for j in range(3):
        st += [valu("v_add_u32", t0, 64 * j, lane), valu("v_mul_u32_u24", t0, 2731, t0), valu("v_lshrrev_b32", t0, 16, t0),
               valu("v_lshrrev_b32", t1, 1, t0),
               valu("v_or_b32", t2, sT2, t1), valu("v_xor_b32", t2, t2, lane), valu("v_lshlrev_b32", vKd[j], 4, t2),
               valu("v_and_b32", t2, 1, t1), valu("v_lshlrev_b32", t2, 2, t2), valu("v_xor_b32", t2, t2, lane),
               valu("v_lshlrev_b32", vVd[j], 4, t2),
               valu("v_xor_b32", t2, t0, lane), valu("v_lshlrev_b32", t2, 4, t2), valu("v_add_u32", t2, 1024 * j, t2),
               valu("v_add_u32", vOr[j], sQreg, t2)]
    st += [valu("v_mul_u32_u24", t0, 384, n31), valu("v_lshrrev_b32", t1, 1, n31), valu("v_and_b32", t2, 7, t1),
           valu("v_xor_b32", t2, t2, hi), valu("v_lshlrev_b32", t2, 4, t2), valu("v_add_u32", vKl, t0, t2)]
    st += [valu("v_and_b32", t2, 3, t1), valu("v_or_b32", t2, sT2, t2), valu("v_xor_b32", t2, t2, hi),
           valu("v_lshlrev_b32", t2, 4, t2), valu("v_add_u32", t2, t0, t2), valu("v_add_u32", vQa0, sQreg, t2)]
    st += [valu("v_lshlrev_b32", t2, 1, hi), valu("v_and_b32", t3, 7, n31), valu("v_xor_b32", t2, t2, t3),
           valu("v_lshlrev_b32", t2, 4, t2), valu("v_add_u32", t2, t0, t2), valu("v_add_u32", vOw, sQreg, t2)]
    st += [valu("v_bfe_u32", t0, lane, 2, 2),
           valu("v_lshlrev_b32", t1, 2, hi), valu("v_add_u32", t1, t1, t0), valu("v_mul_u32_u24", t1, 384, t1),
           valu("v_lshrrev_b32", t2, 1, t0), valu("v_lshlrev_b32", t2, 6, t2), valu("v_add_u32", t1, t1, t2),
           valu("v_and_b32", t2, 1, lane), valu("v_lshlrev_b32", t2, 5, t2), valu("v_add_u32", t1, t1, t2),
           valu("v_bfe_u32", t2, lane, 4, 1), valu("v_lshlrev_b32", t2, 4, t2), valu("v_add_u32", t1, t1, t2),
           valu("v_bfe_u32", t2, lane, 1, 1), valu("v_lshlrev_b32", t2, 3, t2), valu("v_add_u32", vVl, t1, t2)]
    st += [valu("v_mov_b32", lsum[0], 0), valu("v_mov_b32", lsum[1], 0)]
    if o['stamps']:
        st += [valu("v_mov_b32", V(248), 0), valu("v_mov_b32", V(249), 0), raw("s_memtime s[42:43]", 'misc'),
               raw("s_memrealtime s[50:51]", 'misc'), raw("s_waitcnt lgkmcnt(0)", 'misc'),
               salu("s_mov_b32", S(45), 63 if o['stamps'] is True else 0, scc=False), salu("s_mov_b32", S(48), 0, scc=False), salu("s_mov_b32", S(46), 0, scc=False)]
    def issue_item(kind, slot, n):
        vd, srd, off = (vKd, sK, sKoff) if kind == 'K' else (vVd, sV, sVoff)
        r = [salu("s_add_u32", "m0", sW3072, RING0 + slot * TILE), nop(0)]
        r += [dma(vd[j], srd, off, 1024 * j, ('it', n), o['pol_kv']) for j in range(3)] if not o['no_dma'] else []
        r += [salu("s_add_u32", off, off, TILE)]
        return r
    st += issue_item('K', 0, 0)
    for gq in range(8):
        m0, ps, adv = g.q_issue(('q', 0))
        st += [m0, nop(0)] + ps + adv
    st += issue_item('K', 2, 2) + issue_item('V', 3, 3) + issue_item('K', 4, 4)
    st += [salu("s_add_u32", sQoff, sOoff, 128 * HEADB), salu("s_mov_b32", sQm0, sQreg, scc=False)]
    st += [salu("s_mov_b32", sOdr, TENSOR, scc=False)]
    st += [salu("s_mov_b32", sKslot, RING0, scc=False), salu("s_mov_b32", sVslot, RING0 + TILE, scc=False),
           salu("s_mov_b32", sBlk, 0, scc=False)]
    st += [valu("v_add_u32", vKa[0], sKslot, vKl), valu("v_xor_b32", vKa[1], 32, vKa[0]),
           valu("v_xor_b32", vKa[2], 64, vKa[0]), valu("v_xor_b32", vKa[3], 0x60, vKa[0])]
    qa = [V(250), V(251), V(252), V(253)]
    def qaddr():
        return [valu("v_mov_b32", qa[0], vQa0), valu("v_xor_b32", qa[1], 32, vQa0),
                valu("v_xor_b32", qa[2], 64, vQa0), valu("v_xor_b32", qa[3], 0x60, vQa0)]
    st += qaddr()
    st += [Wait(lg=0, vm=lambda c: [('it', 0), ('q', 0)]), barrier()]
    if not o['no_dsread']:
        for s in range(12):
            for u in range(2):
                st.append(dsread("ds_read_b128", Qreg(u, s), qa[s & 3], 128 * (s >> 2) + 12288 * u))
                if (2 * s + u) % 8 == 7: st.append(Wait(lg='auto'))
        st.append(Wait(lg=0))
        for f in range(5): st.append(g.kread(f))
    secs['setup'] = st

    secs['Am1'] = g.phase('A', 1, stream=None, next_reads=False, name="A(-1)")
    secs['Bm1'] = g.phase('B', 1, mfmas=False, own_reads=False,
                          stream=[0, nop(7), nop(3)] + g.max_ops(0) + g.unit_ops(0, [(0, 0), (1, 0)]), name="B(-1)")

    rare_sites = []
    def iteration(par, name, first=False, qgroupsA=0, qreads=False, newblock=False, preA=()):
        lab = f"L_ret_{name}"
        rare_sites.append((par, name, lab))
        chk = g.check_ops(par)
        strA = g.unit_ops(par, [(0, 1), (1, 1)]) + ([] if o['no_valu'] else chk)
        post = []
        if not o['no_valu']:
            post = [raw(f"s_cbranch_vccnz L_rare_{name}", 'branch', r=['vcc']), label(lab),
                    valu("v_add_f32", lsum[0], lsum[0], sig[0]), valu("v_add_f32", lsum[1], lsum[1], sig[1])]
        a = g.phase('A', par, stream=strA, qgroups=qgroupsA, name=f"A {name}", check=post, pre=preA)
        units = g.unit_ops(par ^ 1, [(0, 0), (1, 0)])
        if newblock:
            strB = [2] + g.max_ops(par ^ 1) + units
        else:
            strB = [2] + units
        extra = []
        if qreads:
            extra = [(0, x) for x in []]
        b = g.phase('B', par, stream=strB, first=first, qreads=(qa if qreads else False), name=f"B {name}",
                    pre=(qaddr() + [Wait(vm=lambda c: ('q', c['blk'] + 1))]) if qreads else ())
        return a, b

    a0, b0 = iteration(0, "b0e", first=True, qgroupsA=1)
    a1, b1 = iteration(1, "b0o", qgroupsA=1)
    secs['body0'] = (a0, b0, a1, b1)
    pre = [scmp("s_cmp_eq_u32", sBody, 6), csel(sKoff, sNext, sKoff)]
    a0, b0 = iteration(0, "ste", qgroupsA=1, preA=pre)
    a1, b1 = iteration(1, "sto")
    secs['steady'] = (a0, b0, a1, b1)
    pre = [salu("s_mov_b32", sVoff, sNext, scc=False)]
    a0, b0 = iteration(0, "b7e", qreads=True, preA=pre)
    a1, b1 = iteration(1, "b7o", newblock=True)
    secs['body7'] = (a0, b0, a1, b1)

    ep = [comment("---- epilogue")] + g.stamp_full()
    ep += [nop(1), swap32(lsum[0], lsum[1]), valu("v_add_f32", vR[0], lsum[0], lsum[1]),
           valu("v_rcp_f32", vR[0], vR[0], trans=True), nop(0), valu("v_mov_b32", vR2[0], vR[0]),
           nop(1), swap32(vR[0], vR2[0]),
           valu("v_mov_b32", lsum[0], 0), valu("v_mov_b32", lsum[1], 0)]
    wa = [T[0], T[1], T[2], T[3]]
    ep += [valu("v_mov_b32", wa[0], vOw), valu("v_xor_b32", wa[1], 16, vOw), valu("v_xor_b32", wa[2], 64, vOw),
           valu("v_xor_b32", wa[3], 0x50, vOw)]
    Sfree = V(32, 32)
    Wb = [Sfree[0:8], Sfree[8:16]]
    tmp = Sfree[16:32]
    nt = 0
    rb = [V(204, 4), V(208, 4), V(196, 4), V(212 + 4, 4)]
    def conv(t, u):
        nonlocal nt
        r = []
        src = Oreg(t, u)
        rin = vR if u == 0 else vR2
        if src.p == 'a':
            for i in range(16): r.append(valu("v_accvgpr_read_b32", tmp[i], src[i]))
            src = tmp
        W = Wb[nt & 1]; nt += 1
        for i in range(0, 16, 2):
            r.append(valu("v_pk_mul_f32", src[i:i + 2], src[i:i + 2], rin, mods="op_sel_hi:[1,0]"))
        for i in range(0, 16, 2):
            r.append(valu("v_cvt_pk_bf16_f32", W[i // 2], src[i], src[i + 1]))
        for k in range(2):
            r.append(dswrite("ds_write_b128", wa[2 * (t & 1) + k], W[4 * k:4 * k + 4], 128 * (t >> 1) + 12288 * u))
        return r
    for u in range(2):
        for t in range(6): ep += conv(t, u)
    ep += g.stamp_full()
    for j in range(3): ep.append(valu("v_subrev_u32", vOr[j], 8 * 3072, vOr[j]))
    ep += [salu("s_mov_b32", sOdr, sOoff, scc=False),
           salu("s_add_u32", sOoff, sOoff, 128 * HEADB),
           salu("s_add_u32", sNext, sNext, 128 * HEADB),
           salu("s_add_u32", sQoff, sOoff, 128 * HEADB), salu("s_mov_b32", sQm0, sQreg, scc=False)]
    rb = [V(0, 4), V(4, 4), V(8, 4), V(12, 4), V(16, 4), V(20, 4)]
    fd = [comment("---- final drain"), Wait(lg=0)]
    for i in range(0, 24, 6):
        for k in range(6):
            gq, j = divmod(i + k, 3)
            fd.append(dsread("ds_read_b128", rb[k], vOr[j], 3072 * gq))
        for k in range(6):
            gq, j = divmod(i + k, 3)
            fd.append(Wait(lg='auto'))
            if not o['no_store']:
                fd.append(vstore(rb[k], vLane16, sO, sOdr, 1024 * j, tag=('o',), pol=o['pol_o']))
            if j == 2: fd.append(salu("s_add_u32", sOdr, sOdr, 3072))
    secs['final'] = fd
    secs['epi'] = ep

    def rare(par):
        r = [comment(f"rare rescale path parity {par}")]
        for u in range(2):
            s = Sreg(par, u)
            d = vX0 if u == 0 else vX1
            r.append(valu("v_max3_f32", d, s[0], s[1], s[2]))
            for i in range(3, 15, 2): r.append(valu("v_max3_f32", d, d, s[i], s[i + 1]))
            r.append(valu("v_max_f32", d, d, s[15]))
        r += [nop(1), swap32(vX0, vX1), valu("v_max_f32", vX0, vX0, vX1), valu("v_max_f32", vX0, 0, vX0),
              valu("v_mov_b32", vX1, vX0), nop(1), swap32(vX0, vX1)]
        dl = [vX0, vX1]
        ff = [T[0], T[1]]
        for u in range(2):
            r += [valu("v_sub_f32", ff[u], 0, dl[u]), valu("v_exp_f32", ff[u], ff[u], trans=True), nop(0),
                  valu("v_sub_f32", nmc[u], nmc[u], dl[u]), valu("v_mul_f32", lsum[u], lsum[u], ff[u])]
            for t in range(6):
                ot = Oreg(t, u)
                for i in range(16):
                    if ot.p == 'v':
                        r.append(valu("v_mul_f32", ot[i], ot[i], ff[u]))
                    else:
                        r += [valu("v_accvgpr_read_b32", T[2], ot[i]), valu("v_mul_f32", T[2], T[2], ff[u]),
                              valu("v_accvgpr_write_b32", ot[i], T[2])]
        for u in range(2):
            s = Sreg(par, u)
            for i in range(16): r.append(valu("v_sub_f32", s[i], s[i], dl[u]))
            for i in range(0, 16, 2):
                h, k = divmod(i // 2, 4)
                r += [valu("v_exp_f32", T[2], s[i], trans=True), valu("v_exp_f32", T[3], s[i + 1], trans=True), nop(0)]
                if i == 0: r += [valu("v_add_f32", sig[u], T[2], T[3])]
                else: r += [valu("v_add_f32", sig[u], sig[u], T[2]), valu("v_add_f32", sig[u], sig[u], T[3])]
                r += [valu("v_cvt_pk_bf16_f32", Preg(par, u, h)[k], T[2], T[3])]
        r += [nop(1)]
        return r
    rare_code = []
    for par, name, lab in rare_sites:
        pass
    rsecs = {}
    for par in range(2):
        body = rare(par)
        names = [(n, l) for p, n, l in rare_sites if p == par]
        code = [label(f"L_rare_{n}") for n, l in names] + body
        code += [scmp("s_cmp_eq_u32", sBody, 0), raw(f"s_cbranch_scc1 {names[0][1]}", 'branch'),
                 scmp("s_cmp_eq_u32", sBody, 7), raw(f"s_cbranch_scc1 {names[2][1]}", 'branch'),
                 raw(f"s_branch {names[1][1]}", 'branch')]
        rsecs[par] = code

    def flat(t): return [x for p in t for x in p]
    L = []
    L += secs['setup'] + secs['Am1'] + secs['Bm1']
    def clk():
        if o['stamps'] != 3: return []
        return [raw(x, 'misc') for x in ["s_memtime s[40:41]", "s_memrealtime s[46:47]"]] + [Wait(lg=0)] + \
               [raw(x, 'misc') for x in ["s_mov_b32 m0, s45", "s_nop 0", "v_writelane_b32 v248, s40, m0", "v_writelane_b32 v249, s46, m0"]] + \
               [raw("s_add_u32 s45, s45, 1", 'salu', w=['scc'])]
    blk_head = [label("L_block"), salu("s_mov_b32", sBody, 0, scc=False)] + clk()
    if o['stamps'] is True:
        sb = o.get('stamp_blk', 1)
        blk_head += [scmp("s_cmp_eq_u32", sBlk, sb), csel(S(45), 0, 63), csel(S(48), 1, 0)]
    st_head = [salu("s_mov_b32", sBody, 1, scc=False), raw(f".p2align {int(math.log2(o['align']))}", 'comment'), label("L_steady")]
    st_head[1].states = 0
    st_tail = clk() + [salu("s_add_u32", sBody, sBody, 1), scmp("s_cmp_lt_u32", sBody, 7), raw("s_cbranch_scc1 L_steady", 'branch')]
    blk_tail = [salu("s_add_u32", sBlk, sBlk, 1), scmp("s_cmp_lt_u32", sBlk, NROUND), raw("s_cbranch_scc1 L_block", 'branch')]
    fin = [raw("s_waitcnt vmcnt(0)", 'misc')]
    if o['stamps']:
        fin += [raw(x, 'misc') for x in f'''s_memtime s[40:41]
s_memrealtime s[46:47]
s_load_dwordx2 s[52:53], s[0:1], 40
s_waitcnt lgkmcnt(0)
s_sub_u32 s40, s40, s42
s_sub_u32 s46, s46, s50
v_writelane_b32 v248, s40, 62
v_writelane_b32 v249, s46, 62
v_writelane_b32 v248, s42, 61
v_writelane_b32 v249, s50, 61
s_getreg_b32 s40, hwreg(HW_REG_XCC_ID)
s_getreg_b32 s46, hwreg(HW_REG_HW_ID)
s_nop 1
v_writelane_b32 v248, s40, 60
v_writelane_b32 v249, s46, 60
s_mov_b32 s54, 0x1000000
s_mov_b32 s55, 0x20000
s_lshl_b32 s40, s2, 2
s_add_u32 s40, s40, s44
s_lshl_b32 s40, s40, 9
v_lshrrev_b32 v1, 2, v241
s_nop 4
buffer_store_dword v248, v1, s[52:55], s40 offen
buffer_store_dword v249, v1, s[52:55], s40 offen offset:256
s_waitcnt vmcnt(0)'''.split("\n")]
    fin += [label("L_end"), raw("s_endpgm", 'misc')]

    trace = []
    def run(sec, ctx):
        for i in sec: trace.append((i, ctx))
    run(secs['setup'], dict(p0=0, pidx=0, blk=-1))
    run(secs['Am1'], dict(p0=0, pidx=0, blk=-1))
    run(secs['Bm1'], dict(p0=0, pidx=1, blk=-1))
    p = 2
    for blk in range(NROUND):
        run(blk_head, {})
        for ph in secs['body0']:
            run(ph, dict(p0=0, pidx=p, blk=blk)); p += 1
        run(st_head, {})
        for b in range(6):
            for ph in secs['steady']:
                run(ph, dict(p0=0, pidx=p, blk=blk)); p += 1
            run(st_tail, {})
        for ph in secs['body7']:
            run(ph, dict(p0=0, pidx=p, blk=blk)); p += 1
        run(secs['epi'], dict(blk=blk))
        run(blk_tail, {})
    run(secs['final'], {})
    errs = solve_waits(trace)
    errs += check_hazards(trace)
    for par, name, lab in rare_sites:
        secname = {'b0': 'body0', 'st': 'steady', 'b7': 'body7'}[name[:2]]
        seq = flat(secs[secname])
        idx = [k for k, i in enumerate(seq) if i.kind == 'label' and i.text == lab + ":"]
        if idx:
            k = idx[0]
            t2 = [(i, {}) for i in seq[max(0, k - 40):k] + rsecs[par] + seq[k:k + 40]]
            errs += check_hazards(t2)
    if errs:
        for e in sorted(set(errs)): print("ERR", e)
        raise SystemExit("generation errors")

    L += blk_head + flat(secs['body0']) + st_head + flat(secs['steady']) + st_tail + flat(secs['body7']) + secs['epi'] + blk_tail + secs['final'] + fin
    if not o['no_valu']: L += rsecs[0] + rsecs[1]
    hdr = f"""; Kernarg layout (48 bytes): q(0) k(8) v(16) out(24) debug(32) ws(40)
; @launch grid=(256,1,1) block=(256,1,1) lds={LDS_BYTES}
.amdgcn_target "amdgcn-amd-amdhsa--gfx950"
.text
.globl {KNAME}
.p2align 8
.type {KNAME},@function
{KNAME}:
"""
    ftr = f"""
.section .rodata,"a"
.p2align 6
.amdhsa_kernel {KNAME}
  .amdhsa_next_free_vgpr 512
  .amdhsa_next_free_sgpr 64
  .amdhsa_accum_offset 256
  .amdhsa_group_segment_fixed_size 0
  .amdhsa_kernarg_size 48
  .amdhsa_user_sgpr_count 2
  .amdhsa_user_sgpr_kernarg_segment_ptr 1
  .amdhsa_system_sgpr_workgroup_id_x 1
  .amdhsa_float_denorm_mode_32 3
.end_amdhsa_kernel
"""
    body = []
    for i in L:
        if i.kind == 'label': body.append(i.text)
        elif getattr(i, 'dead', False): continue
        else: body.append("    " + i.text)
    open(path, "w").write(hdr + "\n".join(body) + "\n" + ftr)
    n = sum(1 for i in L if i.states > 0)
    print(f"wrote {path}: {n} instructions")

if __name__ == "__main__":
    import ast
    path = sys.argv[1]
    kw = {}
    for a in sys.argv[2:]:
        k, v = a.split("=", 1)
        kw[k] = ast.literal_eval(v)
    build(path, **kw)
```
